```python
import torch

def _softmax(x, axis=-1):
    return torch.softmax(x, dim=axis)

def _gelu(x):
    return torch.nn.functional.gelu(x, approximate='tanh')

def _silu(x):
    return torch.nn.functional.silu(x)

def _sigmoid(x):
    return torch.sigmoid(x)

def _layernorm(x, axis=-1, eps=1e-05):
    m = x.mean(dim=axis, keepdim=True)
    v = x.var(dim=axis, keepdim=True, unbiased=False)
    return (x - m) / torch.sqrt(v + eps)

def _scatter_add(tgt, idx, src, axis=0):
    return tgt.clone().index_add_(axis, idx, src)

def _segment_sum(src, seg, n):
    out = torch.zeros((n,) + src.shape[1:], dtype=src.dtype)
    return out.index_add_(0, seg, src)

def _pad(x, pw):
    flat = tuple((v for pair in reversed(pw) for v in pair))
    return torch.nn.functional.pad(x, flat)
kernel_name = 'adaLN_cond__grouped_kv_mqa__glu_gated_swiglu__prompt'

def setup_inputs():

    _w = lambda a: (lambda t: t.to(torch.bfloat16) if t.is_floating_point() else t)(torch.as_tensor(a))

    def _A_setup():
        B, S, D, H = (1, 2048, 512, 32)
        Dh = D // H
        return {'x': _w((lambda *s: torch.randn(*s, dtype=torch.bfloat16) * 0.05)(B, S, D)), 'wq': _w((lambda *s: torch.randn(*s, dtype=torch.bfloat16) * 0.1)(D, H * Dh)), 'wk': _w((lambda *s: torch.randn(*s, dtype=torch.bfloat16) * 0.1)(D, Dh)), 'wv': _w((lambda *s: torch.randn(*s, dtype=torch.bfloat16) * 0.1)(D, Dh)), 'wo': _w((lambda *s: torch.randn(*s, dtype=torch.bfloat16) * 0.1)(H * Dh, D))}
    _A_in = _A_setup()

    def _B_setup():
        B, S, D, F = (1, 2048, 512, 1792)
        return {'x': _w((lambda *s: torch.randn(*s, dtype=torch.bfloat16) * 0.05)(B, S, D)), 'w1': _w((lambda *s: torch.randn(*s, dtype=torch.bfloat16) * 1.6)(D, F) * (2.0 / D) ** 0.5), 'w3': _w((lambda *s: torch.randn(*s, dtype=torch.bfloat16) * 1.6)(D, F) * (2.0 / D) ** 0.5), 'w2': _w((lambda *s: torch.randn(*s, dtype=torch.bfloat16) * 1.6)(F, D) * (2.0 / F) ** 0.5)}
    _B_in = _B_setup()
    return {'A_x': _A_in['x'], 'A_wq': _A_in['wq'], 'A_wk': _A_in['wk'], 'A_wv': _A_in['wv'], 'A_wo': _A_in['wo'], 'B_x': _B_in['x'], 'B_w1': _B_in['w1'], 'B_w3': _B_in['w3'], 'B_w2': _B_in['w2'], 'c': _w((lambda *s: torch.randn(*s, dtype=torch.bfloat16) * 0.2)(1, 512) * 8.0), 'w_mod': _w((lambda *s: torch.randn(*s, dtype=torch.bfloat16) * 0.2)(512, 6 * 512) * 512 ** (-0.5) * 8.0)}

def reference(A_x, A_wq, A_wk, A_wv, A_wo, B_x, B_w1, B_w3, B_w2, c, w_mod):

    def _A_ref(x, wq, wk, wv, wo):
        B, S, D = x.shape
        H = 32
        Dh = D // H
        q = (lambda x, *d: x.permute(*d))((x @ wq).reshape(B, S, H, Dh), 0, 2, 1, 3)
        k = x @ wk
        v = x @ wv
        scores = torch.einsum('bhqd,bkd->bhqk', q, k) * Dh ** (-0.5)
        p = _softmax(scores, axis=-1)
        o = torch.einsum('bhqk,bkd->bhqd', p, v)
        return (lambda x, *d: x.permute(*d))(o, 0, 2, 1, 3).reshape(B, S, H * Dh) @ wo

    def _B_ref(x, w1, w3, w2):
        gate = torch.einsum('bsd,df->bsf', x, w1)
        up = torch.einsum('bsd,df->bsf', x, w3)
        h = _silu(gate) * up
        out = torch.einsum('bsf,fd->bsd', h, w2)
        return out
    x = A_x
    mod = (_silu(c) @ w_mod).reshape(c.shape[0], 6, 1, -1)
    sa, ca, ga, sb, cb, gb = (mod[:, 0].clone(), mod[:, 1].clone(), mod[:, 2].clone(), mod[:, 3].clone(), mod[:, 4].clone(), mod[:, 5].clone())
    h = _layernorm(x, axis=-1) * (1 + ca) + sa
    x = x + ga * _A_ref(h, A_wq, A_wk, A_wv, A_wo)
    h = _layernorm(x, axis=-1) * (1 + cb) + sb
    x = x + gb * _B_ref(h, B_w1, B_w3, B_w2)
    return x
```

```python
NAME = "adaLN_cond__grouped_kv_mqa__glu_gated_swiglu__prompt"
KA = dict(x=0, wq=8, wk=16, wv=24, wo=32, bx=40, w1=48, w3=56, w2=64, c=72, wmod=80, out=88, dbg=96, ws=104)
MOD=0x0; XN=0x10000; WQF=0x210000; WKVF=0x290000; WOF=0x2A0000; QF=0x320000; KV=0x520000
X1=0x540000; H2F=0x740000; W13F=0x940000; W2F=0xCC0000; HMF=0xE80000; WSEND=0xE80000+64*112*1024

class Asm:
    def __init__(self): self.L=[]
    def __call__(self, s):
        for l in s.strip('\n').split('\n'):
            l=l.strip()
            if l: self.L.append(('' if l.endswith(':') else '    ')+l)
    def text(self): return '\n'.join(self.L)+'\n'
    def ldptr(self, sreg, name):
        self(f"s_load_dwordx2 s[{sreg}:{sreg+1}], s[0:1], {KA[name]}")
    def srd(self, d, nbytes):
        self(f"s_mov_b32 s{d+2}, {hex(nbytes)}\ns_mov_b32 s{d+3}, 0x00020000")
    def wave_sum(self, vs):
        steps=["quad_perm:[1,0,3,2] row_mask:0xf","quad_perm:[2,3,0,1] row_mask:0xf","row_half_mirror row_mask:0xf",
               "row_mirror row_mask:0xf","row_bcast:15 row_mask:0xa","row_bcast:31 row_mask:0xc"]
        pad = max(0, 3-len(vs))
        for st in steps:
            if pad: self(f"s_nop {pad-1}" if st!=steps[0] else "s_nop 1")
            for v in vs: self(f"v_add_f32_dpp v{v}, v{v}, v{v} {st} bank_mask:0xf")
    def unpack8(self, dst, src):
        for i in range(4):
            self(f"v_lshlrev_b32 v{dst+2*i}, 16, v{src+i}\nv_and_b32 v{dst+2*i+1}, 0xffff0000, v{src+i}")
    def pack8(self, dst, src):
        for i in range(4):
            self(f"v_cvt_pk_bf16_f32 v{dst+i}, v{src+2*i}, v{src+2*i+1}")
    def ln_rows(self, rows, t, stmp):
        A=self
        for i,(f,p) in enumerate(rows):
            s=t+10*i
            A(f"v_add_f32 v{s}, v{f}, v{f+1}\nv_add_f32 v{s+1}, v{f+2}, v{f+3}\nv_add_f32 v{s+2}, v{f+4}, v{f+5}\nv_add_f32 v{s+3}, v{f+6}, v{f+7}")
            A(f"v_add_f32 v{s}, v{s}, v{s+1}\nv_add_f32 v{s+2}, v{s+2}, v{s+3}\nv_add_f32 v{s}, v{s}, v{s+2}")
        A.wave_sum([t+10*i for i in range(len(rows))])
        A("s_nop 0")
        for i in range(len(rows)): A(f"v_readlane_b32 s{stmp+2*i}, v{t+10*i}, 63")
        A("s_nop 1")
        for i,(f,p) in enumerate(rows):
            s=t+10*i
            A(f"v_mov_b32 v{s}, s{stmp+2*i}\nv_mul_f32 v{s}, 0x3b000000, v{s}")
            for j in range(8): A(f"v_sub_f32 v{s+2+j}, v{f+j}, v{s}")
            A(f"v_mul_f32 v{s+1}, v{s+2}, v{s+2}")
            for j in range(1,8): A(f"v_fmac_f32 v{s+1}, v{s+2+j}, v{s+2+j}")
        A.wave_sum([t+10*i+1 for i in range(len(rows))])
        A("s_nop 0")
        for i in range(len(rows)): A(f"v_readlane_b32 s{stmp+2*i+1}, v{t+10*i+1}, 63")
        for i,(f,p) in enumerate(rows):
            s=t+10*i
            A(f"v_cvt_pk_bf16_f32 v{s}, v{s}, v{s}\nv_and_b32 v{s}, 0xffff0000, v{s}")
            for j in range(8): A(f"v_sub_f32 v{s+2+j}, v{f+j}, v{s}")
            A.pack8(p, s+2)
            A.unpack8(s+2, p)
            A(f"""v_mov_b32 v{s+1}, s{stmp+2*i+1}
            v_mul_f32 v{s+1}, 0x3b000000, v{s+1}
            v_cvt_pk_bf16_f32 v{s+1}, v{s+1}, v{s+1}
            v_and_b32 v{s+1}, 0xffff0000, v{s+1}
            v_add_f32 v{s+1}, 0x3727c5ac, v{s+1}
            v_cvt_pk_bf16_f32 v{s+1}, v{s+1}, v{s+1}
            v_and_b32 v{s+1}, 0xffff0000, v{s+1}
            v_sqrt_f32 v{s+1}, v{s+1}
            s_nop 0
            v_cvt_pk_bf16_f32 v{s+1}, v{s+1}, v{s+1}
            v_and_b32 v{s+1}, 0xffff0000, v{s+1}
            v_rcp_f32 v{s+1}, v{s+1}
            s_nop 0""")
            for j in range(8): A(f"v_mul_f32 v{s+2+j}, v{s+2+j}, v{s+1}")
            A.pack8(p, s+2)
    def frag_gather(self, dst, tmp, va, vb, srd, soff, kstride):
        for j in range(8):
            v = va if j<4 else vb
            self(f"buffer_load_ushort v{tmp+j}, v{v}, s[{srd}:{srd+3}], {soff} offen offset:{(j%4)*kstride}")
    def frag_combine(self, dst, tmp):
        for i in range(4): self(f"v_lshl_or_b32 v{dst+i}, v{tmp+2*i+1}, 16, v{tmp+2*i}")

def kernel_header(label):
    return f".globl {label}\n.p2align 8\n.type {label},@function\n{label}:\n"
def kernel_desc(label, vgpr, accum=None, sgpr=96):
    if accum is None: accum=(vgpr+3)//4*4
    return f""".p2align 6
.amdhsa_kernel {label}
  .amdhsa_next_free_vgpr {vgpr}
  .amdhsa_next_free_sgpr {sgpr}
  .amdhsa_accum_offset {accum}
  .amdhsa_group_segment_fixed_size 0
  .amdhsa_kernarg_size 112
  .amdhsa_user_sgpr_count 2
  .amdhsa_user_sgpr_kernarg_segment_ptr 1
  .amdhsa_system_sgpr_workgroup_id_x 1
.end_amdhsa_kernel
"""
```

```python
import sys, importlib
from common import *
import k01, k2n, k34, k3n, k3f, k01f
def build(ks, path):
    ref=open(f'cdna_kernels/{NAME}.s.ref').read().split('\n')
    head=[l for l in ref if l.startswith(';') and '@launch' not in l and 'Override' not in l and 'grid=ceil' not in l]
    out='\n'.join(head)+'\n'+'\n'.join(k[2] for k in ks)+'\n.amdgcn_target "amdgcn-amd-amdhsa--gfx950"\n.text\n'
    for k in ks:
        label=k[2].split('kernel=')[1].split()[0]
        out+=kernel_header(label)+k[0]
    out+='.section .rodata,"a"\n'+''.join(k[1] for k in ks)
    open(path,'w').write(out)
if __name__=='__main__':
    ks=[k01.k0(), k01.k1(), k2n.k2(), k3n.k3(), k34.k4()]
    if int(os.environ.get('FUSE','1')): ks=ks[:3]+[k3f.k3f()]
    if int(os.environ.get('FUSE01','1')): ks=[k01f.k01()]+ks[2:]
    if k2n.FZ: ks=ks[:2]
    build(ks, sys.argv[1] if len(sys.argv)>1 else f'cdna_kernels/{NAME}.s')
```

```python
from common import *
def perm_nlocal16(A, dst, m, t):
    A(f"""v_bfe_u32 v{dst}, v{m}, 2, 1
    v_lshlrev_b32 v{dst}, 4, v{dst}
    v_lshrrev_b32 v{t}, 3, v{m}
    v_lshl_add_u32 v{dst}, v{t}, 2, v{dst}
    v_and_b32 v{t}, 3, v{m}
    v_add_u32 v{dst}, v{dst}, v{t}""")
def perm_nlocal8(A, dst, m, t):
    A(f"""v_bfe_u32 v{dst}, v{m}, 2, 1
    v_lshlrev_b32 v{dst}, 3, v{dst}
    v_bfe_u32 v{t}, v{m}, 3, 1
    v_lshl_add_u32 v{dst}, v{t}, 2, v{dst}
    v_and_b32 v{t}, 3, v{m}
    v_add_u32 v{dst}, v{dst}, v{t}""")

def k0():
    A=Asm()
    A("s_cmp_ge_u32 s2, 360\ns_cbranch_scc1 k0_end")
    A.ldptr(4,'ws')
    A("v_and_b32 v1, 63, v0\nv_lshrrev_b32 v2, 6, v0\ns_nop 0\nv_readfirstlane_b32 s3, v2")
    A("s_cmp_lt_u32 s2, 96\ns_cbranch_scc1 k0_mod")
    A("s_cmp_lt_u32 s2, 104\ns_cbranch_scc1 k0_wkv")
    A.ldptr(8,'x'); A.ldptr(12,'wq'); A.ldptr(16,'wo')
    A("s_sub_u32 s2, s2, 104")
    A("s_lshl_b32 s20, s2, 2\ns_add_u32 s20, s20, s3")
    A("s_lshl_b32 s21, s20, 11")
    A("v_lshlrev_b32 v3, 4, v1")
    A("s_waitcnt lgkmcnt(0)")
    A.srd(4,WSEND); A.srd(8,2097152); A.srd(12,524288); A.srd(16,524288)
    A("buffer_load_dwordx4 v[4:7], v3, s[8:11], s21 offen\nbuffer_load_dwordx4 v[8:11], v3, s[8:11], s21 offen offset:1024")
    A("s_cmp_ge_u32 s20, 512\ns_cbranch_scc1 k0_wo")
    A("v_and_b32 v12, 31, v1")
    perm_nlocal16(A,13,12,14)
    A("""v_lshrrev_b32 v14, 5, v1
    v_lshlrev_b32 v14, 13, v14
    v_lshl_add_u32 v13, v13, 1, v14
    v_add_u32 v14, 4096, v13
    s_and_b32 s22, s20, 31
    s_lshl_b32 s22, s22, 14
    s_lshr_b32 s23, s20, 5
    s_lshl_b32 s23, s23, 6
    s_add_u32 s22, s22, s23""")
    A.frag_gather(0,16,13,14,12,'s22',1024)
    A(f"s_lshl_b32 s24, s20, 10\ns_add_u32 s24, s24, {hex(WQF)}\ns_branch k0_ln")
    A("k0_wo:")
    A("""s_sub_u32 s20, s20, 512
    v_and_b32 v12, 15, v1
    v_lshrrev_b32 v13, 2, v12
    v_lshlrev_b32 v13, 4, v13
    v_and_b32 v14, 3, v12
    v_add_u32 v13, v13, v14
    v_lshrrev_b32 v14, 4, v1
    v_lshlrev_b32 v14, 14, v14
    v_lshl_add_u32 v13, v13, 1, v14
    v_add_u32 v14, 8192, v13
    s_and_b32 s22, s20, 7
    s_lshl_b32 s22, s22, 16
    s_bfe_u32 s23, s20, 0x10003
    s_lshl_b32 s23, s23, 12
    s_add_u32 s22, s22, s23
    s_lshr_b32 s23, s20, 6
    s_lshl_b32 s23, s23, 7
    s_add_u32 s22, s22, s23
    s_bfe_u32 s23, s20, 0x20004
    s_lshl_b32 s23, s23, 3
    s_add_u32 s22, s22, s23""")
    A.frag_gather(0,16,13,14,16,'s22',1024)
    A(f"s_lshl_b32 s24, s20, 10\ns_add_u32 s24, s24, {hex(WOF)}")
    A("k0_ln:")
    A("s_waitcnt vmcnt(8)")
    A.unpack8(24,4); A.unpack8(32,8)
    A.ln_rows([(24,4),(32,8)], 40, 26)
    A(f"s_add_u32 s21, s21, {hex(XN)}")
    A("buffer_store_dwordx4 v[4:7], v3, s[4:7], s21 offen\nbuffer_store_dwordx4 v[8:11], v3, s[4:7], s21 offen offset:1024")
    A("s_waitcnt vmcnt(2)")
    A.frag_combine(12,16)
    A("buffer_store_dwordx4 v[12:15], v3, s[4:7], s24 offen\ns_endpgm")
    A("k0_wkv:")
    A.ldptr(8,'wk'); A.ldptr(12,'wv')
    A("s_sub_u32 s2, s2, 96\ns_lshl_b32 s20, s2, 2\ns_add_u32 s20, s20, s3")
    A("v_and_b32 v12, 15, v1")
    perm_nlocal8(A,13,12,14)
    A("""v_lshrrev_b32 v14, 5, v1
    v_lshlrev_b32 v14, 8, v14
    v_lshl_add_u32 v13, v13, 1, v14
    v_lshl_add_u32 v15, v12, 1, v14
    v_add_u32 v14, 128, v13
    v_add_u32 v12, 128, v15
    s_lshl_b32 s22, s20, 9
    v_lshlrev_b32 v3, 4, v1
    s_waitcnt lgkmcnt(0)""")
    A.srd(4,WSEND); A.srd(8,16384); A.srd(12,16384)
    A.frag_gather(0,16,13,14,8,'s22',32)
    A.frag_gather(0,24,15,12,12,'s22',32)
    A(f"s_lshl_b32 s24, s20, 10\ns_add_u32 s24, s24, {hex(WKVF)}")
    A("v_and_b32 v2, 16, v1\nv_cmp_eq_u32 vcc, 0, v2\ns_nop 1\ns_waitcnt vmcnt(0)")
    for j in range(8): A(f"v_cndmask_b32 v{16+j}, v{24+j}, v{16+j}, vcc")
    A.frag_combine(12,16)
    A("buffer_store_dwordx4 v[12:15], v3, s[4:7], s24 offen\ns_endpgm")
    A("k0_mod:")
    A.ldptr(8,'c'); A.ldptr(12,'wmod')
    A("""v_lshrrev_b32 v2, 2, v0
    v_and_b32 v3, 3, v0
    v_mul_u32_u24 v4, 6144, v2
    v_lshl_add_u32 v4, v3, 4, v4
    v_lshlrev_b32 v5, 1, v2
    s_lshl_b32 s20, s2, 6
    s_waitcnt lgkmcnt(0)""")
    A.srd(4,WSEND); A.srd(8,1024); A.srd(12,3145728)
    for i in range(8): A(f"buffer_load_ushort v{8+i}, v5, s[8:11], 0 offen offset:{128*i}")
    for i in range(8):
        A(f"buffer_load_dwordx4 v[{16+4*i}:{19+4*i}], v4, s[12:15], s20 offen\ns_add_u32 s20, s20, {64*6144}")
    for j in range(8): A(f"v_mov_b32 v{48+j}, 0")
    A("s_waitcnt vmcnt(8)")
    for i in range(8): A(f"v_lshlrev_b32 v{8+i}, 16, v{8+i}\nv_mul_f32 v{56+i}, 0xbfb8aa3b, v{8+i}")
    for i in range(8): A(f"v_exp_f32 v{56+i}, v{56+i}")
    for i in range(8): A(f"v_add_f32 v{56+i}, 1.0, v{56+i}")
    for i in range(8): A(f"v_rcp_f32 v{56+i}, v{56+i}")
    for i in range(8): A(f"v_mul_f32 v{8+i}, v{8+i}, v{56+i}")
    for i in range(8): A(f"v_cvt_pk_bf16_f32 v{8+i}, v{8+i}, v{8+i}\nv_and_b32 v{8+i}, 0xffff0000, v{8+i}")
    for i in range(8):
        A(f"s_waitcnt vmcnt({7-i})")
        A.unpack8(56,16+4*i)
        for j in range(8): A(f"v_fmac_f32 v{48+j}, v{8+i}, v{56+j}")
    for st in ["row_ror:4","row_ror:8"]:
        for j in range(8): A(f"v_add_f32_dpp v{48+j}, v{48+j}, v{48+j} {st} row_mask:0xf bank_mask:0xf")
    A("""v_lshrrev_b32 v2, 4, v0
    v_lshlrev_b32 v2, 7, v2
    v_lshl_add_u32 v2, v3, 5, v2
    ds_write_b128 v2, v[48:51]
    ds_write_b128 v2, v[52:55] offset:16
    s_waitcnt lgkmcnt(0)
    s_barrier
    s_cmp_lg_u32 s3, 0
    s_cbranch_scc1 k0_end
    v_and_b32 v2, 31, v0
    v_lshlrev_b32 v2, 2, v2""")
    for i in range(16): A(f"ds_read_b32 v{8+i}, v2 offset:{128*i}")
    A("s_waitcnt lgkmcnt(0)")
    for st in (8,4,2,1):
        for i in range(st): A(f"v_add_f32 v{8+i}, v{8+i}, v{8+i+st}")
    A("""v_cvt_pk_bf16_f32 v8, v8, v8
    v_and_b32 v8, 0xffff0000, v8
    s_lshr_b32 s20, s2, 4
    s_cmp_eq_u32 s20, 1
    s_cselect_b32 s21, 1.0, 0
    s_cmp_eq_u32 s20, 4
    s_cselect_b32 s21, 1.0, s21
    v_add_f32 v8, s21, v8
    v_cvt_pk_bf16_f32 v8, v8, v8
    v_and_b32 v8, 0xffff0000, v8
    s_lshl_b32 s20, s2, 7
    buffer_store_dword v8, v2, s[4:7], s20 offen""")
    A("k0_end:\ns_endpgm")
    return A.text(), kernel_desc("k0_kernel", 64), "; @launch kernel=k0_kernel grid=(360,1,1) block=(256,1,1) lds=2048"

def k1():
    A=Asm()
    A("s_cmp_ge_u32 s2, 256\ns_cbranch_scc1 k1_end")
    A.ldptr(4,'ws')
    A("v_and_b32 v1, 63, v0\nv_lshrrev_b32 v2, 6, v0\ns_nop 0\nv_readfirstlane_b32 s3, v2")
    A("""s_and_b32 s20, s2, 7
    s_lshr_b32 s21, s2, 5
    s_lshl_b32 s21, s21, 3
    s_add_u32 s20, s20, s21
    s_bfe_u32 s21, s2, 0x20003
    v_lshlrev_b32 v3, 4, v1
    v_and_b32 v4, 31, v1
    v_lshlrev_b32 v4, 4, v4
    v_lshrrev_b32 v5, 5, v1
    v_mul_u32_u24 v5, 528, v5
    v_add_u32 v4, v4, v5
    s_waitcnt lgkmcnt(0)""")
    A.srd(4,WSEND)
    A("s_cmp_eq_u32 s3, 4\ns_cbranch_scc1 k1_kv")
    W=128
    A(f"""s_lshl_b32 s22, s20, 15
    s_lshl_b32 s23, s3, 13
    s_add_u32 s22, s22, s23
    s_add_u32 s22, s22, {hex(XN)}
    v_lshlrev_b32 v6, 5, v1""")
    for i in range(8):
        A(f"buffer_load_dwordx4 v[{8+4*i}:{11+4*i}], v3, s[4:7], s22 offen offset:{(i%4)*1024}")
        if i==3: A("s_add_u32 s22, s22, 4096")
    A("""buffer_load_dwordx4 v[40:43], v6, s[4:7], 0 offen
    buffer_load_dwordx4 v[44:47], v6, s[4:7], 0 offen offset:16
    buffer_load_dwordx4 v[48:51], v6, s[4:7], 0 offen offset:2048
    buffer_load_dwordx4 v[52:55], v6, s[4:7], 0 offen offset:2064""")
    A(f"""s_lshl_b32 s23, s21, 2
    s_add_u32 s23, s23, s3
    s_lshl_b32 s24, s23, 15
    s_add_u32 s24, s24, {hex(WQF)}""")
    for s in range(32):
        A(f"buffer_load_dwordx4 v[{W+4*s}:{W+4*s+3}], v3, s[4:7], s24 offen offset:{(s%4)*1024}")
        if s%4==3 and s<31: A("s_add_u32 s24, s24, 4096")
    A("v_mul_u32_u24 v7, 528, v1\ns_lshl_b32 s25, s3, 7\nv_add_u32 v7, s25, v7")
    A("s_waitcnt vmcnt(32)")
    for i in range(8):
        t = 56 + 8*(i%2); p=8+4*i
        A.unpack8(t,p)
        for j in range(4): A(f"v_pk_mul_f32 v[{t+2*j}:{t+2*j+1}], v[{t+2*j}:{t+2*j+1}], v[{48+2*j}:{49+2*j}]")
        A.pack8(p,t); A.unpack8(t,p)
        for j in range(4): A(f"v_pk_add_f32 v[{t+2*j}:{t+2*j+1}], v[{t+2*j}:{t+2*j+1}], v[{40+2*j}:{41+2*j}]")
        A.pack8(p,t)
        A(f"ds_write_b128 v7, v[{p}:{p+3}] offset:{16*i}")
    def mm(swap):
        A("s_waitcnt lgkmcnt(0)\ns_barrier")
        NB=8
        rd=lambda s: A(f"ds_read_b128 v[{8+4*(s%NB)}:{11+4*(s%NB)}], v4 offset:{1056*s}")
        for s in range(NB): rd(s)
        for s in range(32):
            A(f"s_waitcnt vmcnt({31-s}) lgkmcnt({min(NB-1,31-s)})")
            a=f"v[{W+4*s}:{W+4*s+3}]"; b=f"v[{8+4*(s%NB)}:{11+4*(s%NB)}]"
            if swap: a,b=b,a
            A(f"v_mfma_f32_32x32x16_bf16 v[64:79], {a}, {b}, {'0' if s==0 else 'v[64:79]'}")
            if s+NB<32: rd(s+NB)
        A("s_nop 15")
    mm(False)
    A.pack8(8,64); A.pack8(12,72); A.unpack8(64,8); A.unpack8(72,12)
    for i in range(16): A(f"v_mul_f32 v{64+i}, 0x3eb8aa3b, v{64+i}")
    A.pack8(8,64); A.pack8(12,72)
    A(f"""s_lshl_b32 s22, s20, 15
    s_lshl_b32 s23, s23, 11
    s_add_u32 s22, s22, s23
    s_add_u32 s22, s22, {hex(QF)}
    buffer_store_dwordx4 v[8:11], v3, s[4:7], s22 offen
    buffer_store_dwordx4 v[12:15], v3, s[4:7], s22 offen offset:1024
    s_endpgm""")
    A("k1_kv:\ns_cmp_ge_u32 s21, 2\ns_cbranch_scc1 k1_end")
    A(f"s_mov_b32 s24, {hex(WKVF)}")
    for s in range(32):
        A(f"buffer_load_dwordx4 v[{W+4*s}:{W+4*s+3}], v3, s[4:7], s24 offen offset:{(s%4)*1024}")
        if s%4==3 and s<31: A("s_add_u32 s24, s24, 4096")
    A(f"s_lshl_b32 s22, s20, 11\ns_add_u32 s22, s22, {hex(KV)}\ns_cmp_eq_u32 s21, 1\ns_cbranch_scc1 k1_v")
    mm(False)
    A.pack8(8,64)
    A("buffer_store_dwordx4 v[8:11], v3, s[4:7], s22 offen\ns_endpgm")
    A("k1_v:")
    mm(True)
    A.pack8(8,64); A.pack8(12,72)
    A("""v_and_b32 v5, 15, v1
    v_lshlrev_b32 v5, 4, v5
    v_lshrrev_b32 v6, 5, v1
    v_lshl_add_u32 v5, v6, 8, v5
    v_and_b32 v6, 16, v1
    v_cmp_ne_u32 vcc, 0, v6
    s_and_saveexec_b64 s[26:27], vcc
    buffer_store_dwordx4 v[8:11], v5, s[4:7], s22 offen offset:1024
    buffer_store_dwordx4 v[12:15], v5, s[4:7], s22 offen offset:1536""")
    A("k1_end:\ns_endpgm")
    return A.text(), kernel_desc("k1_kernel", 256), "; @launch kernel=k1_kernel grid=(256,1,1) block=(320,1,1) lds=33792"
```

```python
from common import *
from k01 import perm_nlocal16, perm_nlocal8
OFFS=88.0
def k2():
    A=Asm()
    Q=4; NM=8; S=[24,40]; O=56; P0=72; P1=76; K=80; V0=84; V1=88; KA_=92; VA=93; SJ=96
    WO=128
    LDS_O=131072+4096
    A("s_cmp_ge_u32 s2, 256\ns_cbranch_scc1 k2_end")
    A.ldptr(4,'ws'); A.ldptr(8,'x'); A.ldptr(12,'w1'); A.ldptr(16,'w3'); A.ldptr(20,'w2')
    A("v_and_b32 v1, 63, v0\nv_lshrrev_b32 v2, 6, v0\ns_nop 0\nv_readfirstlane_b32 s3, v2")
    A(f"""s_lshl_b32 s24, s2, 3
    s_add_u32 s24, s24, s3
    v_lshlrev_b32 v3, 4, v1
    v_and_b32 v2, 31, v1
    v_lshrrev_b32 v{KA_}, 1, v2
    v_lshlrev_b32 v{KA_}, 11, v{KA_}
    v_and_b32 v{VA}, 1, v2
    v_lshl_add_u32 v{KA_}, v{VA}, 9, v{KA_}
    v_lshrrev_b32 v{VA}, 5, v1
    v_lshl_add_u32 v{KA_}, v{VA}, 10, v{KA_}
    s_lshr_b32 s25, s24, 5
    s_lshl_b32 s25, s25, 15
    s_and_b32 s26, s24, 31
    s_lshl_b32 s26, s26, 4
    s_add_u32 s25, s25, s26
    s_add_u32 s26, s25, {hex(QF)}
    s_waitcnt lgkmcnt(0)""")
    A.srd(4,WSEND); A.srd(8,2097152); A.srd(12,1835008); A.srd(16,1835008); A.srd(20,1835008)
    A(f"buffer_load_dwordx4 v[{Q}:{Q+3}], v{KA_}, s[4:7], s26 offen")
    A(f"s_lshl_b32 s27, s3, 12\ns_add_u32 s28, s27, {hex(KV)}")
    for c in range(4):
        A(f"s_mov_b32 m0, s27\ns_nop 0")
        for i in range(4): A(f"buffer_load_dwordx4 v3, s[4:7], s28 offen offset:{1024*i} lds")
        if c<3: A("s_add_u32 s27, s27, 32768\ns_add_u32 s28, s28, 32768")
    A(f"""v_and_b32 v2, 15, v1
    v_lshlrev_b32 v2, 4, v2
    v_lshl_add_u32 v{VA}, v{VA}, 8, v2
    v_add_u32 v94, 1024, v{VA}
    s_mov_b32 s30, 0x0000ffff
    s_mov_b32 s31, 0x0000ffff
    s_mov_b32 s33, 0
    s_mov_b32 s34, 4
    s_mov_b32 s35, {hex(0x42b00000)}""")
    for i in range(8): A(f"v_mov_b32 v{V0+i}, 0x3f803f80")
    A("s_waitcnt vmcnt(12)\ns_barrier")
    A("k2_phaseA:")
    A(f"v_mov_b32 v{KA_}, v3\nv_mov_b32 v{P0}, 0xff800000\ns_mov_b32 s32, 0")
    A("k2_maxloop:")
    A(f"""ds_read_b128 v[{K}:{K+3}], v{KA_}
    ds_read_b128 v[{O}:{O+3}], v{KA_} offset:2048
    v_add_u32 v{KA_}, 4096, v{KA_}
    s_waitcnt lgkmcnt(1)
    v_mfma_f32_32x32x16_bf16 v[{S[0]}:{S[0]+15}], v[{K}:{K+3}], v[{Q}:{Q+3}], 0
    s_waitcnt lgkmcnt(0)
    v_mfma_f32_32x32x16_bf16 v[{S[1]}:{S[1]+15}], v[{O}:{O+3}], v[{Q}:{Q+3}], 0
    s_add_u32 s32, s32, 2
    s_nop 9""")
    for b in range(2):
        for i in range(8): A(f"v_max3_f32 v{P0}, v{S[b]+2*i}, v{S[b]+2*i+1}, v{P0}")
    A("s_cmp_lt_u32 s32, s34\ns_cbranch_scc1 k2_maxloop")
    A(f"""v_mov_b32 v{P0+1}, v{P0}
    s_nop 1
    v_permlane32_swap_b32 v{P0}, v{P0+1}
    s_nop 1
    v_max_f32 v{P0}, v{P0}, v{P0+1}
    v_add_f32 v{P0}, s35, v{P0}
    v_sub_f32 v{NM}, 0, v{P0}""")
    for i in range(1,16): A(f"v_mov_b32 v{NM+i}, v{NM}")
    for i in range(16): A(f"v_mov_b32 v{O+i}, 0")
    for i in range(4): A(f"v_mov_b32 v{P1+i}, 0")
    A(f"""v_mov_b32 v{KA_}, v3
    v_mov_b32 v{VA}, v94
    ds_read_b128 v[{K}:{K+3}], v{KA_}
    s_waitcnt lgkmcnt(0)
    v_mfma_f32_32x32x16_bf16 v[{S[0]}:{S[0]+15}], v[{K}:{K+3}], v[{Q}:{Q+3}], v[{NM}:{NM+15}]
    ds_read_b128 v[{K}:{K+3}], v{KA_} offset:2048
    s_mov_b64 exec, s[30:31]
    ds_read_b128 v[{V1}:{V1+3}], v{VA} offset:512
    ds_read_b128 v[{V0}:{V0+3}], v{VA}
    s_mov_b64 exec, -1
    s_mov_b32 s32, 0
    s_nop 6""")
    U=4
    A("k2_loop:")
    A("s_and_b32 s36, s32, 3\ns_cmp_eq_u32 s36, 3\ns_cbranch_scc1 k2_event\nk2_loop_body:")
    for u in range(U):
        s=S[u%2]; sn=S[(u+1)%2]
        e=lambda i: A(f"v_exp_f32 v{s+i}, v{s+i}")
        c=lambda i: A(f"v_cvt_pk_bf16_f32 v{P0+i}, v{s+2*i}, v{s+2*i+1}")
        e(0); e(1)
        A(f"s_waitcnt lgkmcnt(1)\nv_mfma_f32_32x32x16_bf16 v[{O}:{O+15}], v[{V1}:{V1+3}], v[{P1}:{P1+3}], v[{O}:{O+15}]")
        e(2); e(3); c(0); e(4); e(5)
        A(f"v_mfma_f32_32x32x16_bf16 v[{sn}:{sn+15}], v[{K}:{K+3}], v[{Q}:{Q+3}], v[{NM}:{NM+15}]")
        A(f"ds_read_b128 v[{K}:{K+3}], v{KA_} offset:{2048*(u+2)}")
        c(1); e(6); e(7); c(2); e(8); e(9); c(3); e(10); e(11)
        A(f"s_waitcnt lgkmcnt(1)\nv_mfma_f32_32x32x16_bf16 v[{O}:{O+15}], v[{V0}:{V0+3}], v[{P0}:{P0+3}], v[{O}:{O+15}]")
        A(f"""s_mov_b64 exec, s[30:31]
        ds_read_b128 v[{V1}:{V1+3}], v{VA} offset:{2048*u+512}
        ds_read_b128 v[{V0}:{V0+3}], v{VA} offset:{2048*(u+1)}
        s_mov_b64 exec, -1""")
        c(4); e(12); e(13); c(5); e(14); e(15)
        if u==U-1: A(f"v_add_u32 v{KA_}, {2048*U}, v{KA_}\nv_add_u32 v{VA}, {2048*U}, v{VA}")
        c(6); c(7)
    A(f"s_add_u32 s32, s32, 1\ns_cmp_lt_u32 s32, {64//U}\ns_cbranch_scc1 k2_loop")
    A(f"s_waitcnt lgkmcnt(0)\nv_mfma_f32_32x32x16_bf16 v[{O}:{O+15}], v[{V1}:{V1+3}], v[{P1}:{P1+3}], v[{O}:{O+15}]")
    A("s_nop 15")
    A(f"""v_max3_f32 v{P0}, |v{O}|, |v{O+1}|, |v{O+2}|
    v_max3_f32 v{P0}, |v{O+3}|, |v{O+4}|, v{P0}
    v_max3_f32 v{P0}, |v{O+5}|, |v{O+6}|, v{P0}
    v_max_f32 v{P0}, |v{O+7}|, v{P0}
    v_add_f32 v{P0+1}, v{O}, v{O+1}
    v_add_f32 v{P0+2}, v{O+2}, v{O+3}
    v_add_f32 v{P0+3}, v{O+4}, v{O+5}
    v_add_f32 v{P1}, v{O+6}, v{O+7}
    v_add_f32 v{P0+1}, v{P0+1}, v{P0+2}
    v_add_f32 v{P0+3}, v{P0+3}, v{P1}
    v_add_f32 v{P0+1}, v{P0+1}, v{P0+3}
    v_add_f32 v{P0+1}, v{P0+1}, v{O+8}
    v_mov_b32 v{P0+2}, 0x207
    v_cmp_class_f32 s[36:37], v{P0+1}, v{P0+2}
    v_cmp_gt_f32 vcc, 0x0f800000, v{P0}
    s_nop 1
    s_or_b64 s[36:37], s[36:37], vcc
    s_cmp_eq_u64 s[36:37], 0
    s_cbranch_scc1 k2_tail
    s_cmp_lg_u32 s33, 0
    s_cbranch_scc1 k2_tail
    s_mov_b32 s33, 1
    s_mov_b32 s34, 64
    s_mov_b32 s35, 0
    s_branch k2_phaseA""")
    A("k2_event:\ns_cmp_lg_u32 s33, 0\ns_cbranch_scc1 k2_loop_body")
    A("s_cmp_eq_u32 s32, 7\ns_cbranch_scc1 k2_ev1\ns_cmp_eq_u32 s32, 11\ns_cbranch_scc1 k2_ev2\ns_cmp_eq_u32 s32, 15\ns_cbranch_scc1 k2_loop_body")
    A("s_waitcnt vmcnt(8)\ns_barrier")
    T=120
    A(f"v_and_b32 v{T}, 15, v1")
    perm_nlocal8(A,T+1,T,T+2)
    A(f"""v_lshrrev_b32 v{T+2}, 5, v1
    v_mul_u32_u24 v{T+2}, {8*3584}, v{T+2}
    v_lshl_add_u32 v{T+1}, v{T+1}, 1, v{T+2}
    s_mov_b32 s40, 0xffff0000
    s_mov_b32 s41, 0xffff0000""")
    for fi in range(2):
        A(f"""s_add_u32 s38, s24, {2048*fi}
        s_min_u32 s38, s38, 3583
        s_and_b32 s36, s38, 31
        s_mul_i32 s36, s36, {16*3584}
        s_lshr_b32 s37, s38, 5
        s_lshl_b32 s37, s37, 5
        s_add_u32 s36, s36, s37""")
        for half,(mask,srd) in enumerate((("s[30:31]",12),("s[40:41]",16))):
            A(f"s_mov_b64 exec, {mask}\ns_mov_b32 s37, s36")
            for j in range(8):
                A(f"buffer_load_ushort v{SJ+8*fi+j}, v{T+1}, s[{srd}:{srd+3}], s37 offen" + (" offset:3584" if j%2 else ""))
                if j%2 and j<7: A("s_add_u32 s37, s37, 7168")
        A("s_mov_b64 exec, -1")
    A(f"v_and_b32 v{T}, 31, v1")
    perm_nlocal16(A,T+1,T,T+2)
    A(f"""v_lshrrev_b32 v{T+2}, 5, v1
    v_lshlrev_b32 v{T+2}, 13, v{T+2}
    v_lshl_add_u32 v{T+1}, v{T+1}, 1, v{T+2}
    v_add_u32 v{T+2}, 4096, v{T+1}
    s_min_u32 s38, s24, 1791
    s_mul_i32 s37, s38, 9363
    s_lshr_b32 s37, s37, 20
    s_mul_i32 s36, s37, 112
    s_sub_u32 s36, s38, s36
    s_lshl_b32 s36, s36, 14
    s_lshl_b32 s37, s37, 6
    s_add_u32 s36, s36, s37""")
    A.frag_gather(0,SJ+16,T+1,T+2,20,'s36',1024)
    A("s_branch k2_loop_body")
    A("k2_ev1:\ns_waitcnt vmcnt(44)\ns_barrier\ns_branch k2_loop_body")
    A("k2_ev2:\ns_waitcnt vmcnt(0)\ns_barrier")
    for fi in range(3): A.frag_combine(SJ+8*fi, SJ+8*fi)
    A(f"""s_lshl_b32 s36, s24, 10
    s_add_u32 s37, s36, {hex(W13F)}
    buffer_store_dwordx4 v[{SJ}:{SJ+3}], v3, s[4:7], s37 offen
    s_cmp_ge_u32 s24, 1536
    s_cbranch_scc1 k2_sk1
    s_add_u32 s37, s37, {2048*1024}
    buffer_store_dwordx4 v[{SJ+8}:{SJ+11}], v3, s[4:7], s37 offen
    k2_sk1:
    s_cmp_ge_u32 s24, 1792
    s_cbranch_scc1 k2_sk2
    s_add_u32 s37, s36, {hex(W2F)}
    buffer_store_dwordx4 v[{SJ+16}:{SJ+19}], v3, s[4:7], s37 offen
    k2_sk2:
    s_lshl_b32 s38, s3, 16
    s_add_u32 s38, s38, {hex(WOF)}""")
    def wo_load(reg, tile, s):
        off=tile*16384+s*1024
        A(f"s_add_u32 s39, s38, {off & ~4095}\nbuffer_load_dwordx4 v[{reg}:{reg+3}], v3, s[4:7], s39 offen offset:{off&4095}")
    for s in range(8):
        for t in range(4): wo_load(WO+16*s+4*t, t, s)
    A("s_branch k2_loop_body")
    A("k2_tail:")
    A(f"v_rcp_f32 v{P0}, v{O+8}\ns_nop 0")
    for i in range(8): A(f"v_mul_f32 v{O+i}, v{O+i}, v{P0}")
    A.pack8(P0,O)
    A(f"""v_lshlrev_b32 v2, 7, v1
    s_lshl_b32 s36, s3, 4
    s_add_u32 s36, s36, {LDS_O}
    v_add_u32 v2, s36, v2
    ds_write_b128 v2, v[{P0}:{P0+3}]""")
    W2R=8
    for s in range(8,12):
        for t in range(4): wo_load(W2R+16*(s-8)+4*t, t, s)
    A(f"""v_lshrrev_b32 v2, 4, v1
    v_lshlrev_b32 v2, 7, v2
    v_and_b32 v4, 7, v1
    v_lshl_add_u32 v2, v4, 4, v2
    v_add_u32 v2, {LDS_O}, v2
    s_waitcnt lgkmcnt(0)
    s_barrier""")
    B=80; ACC=112
    for s in range(8): A(f"ds_read_b128 v[{B+4*s}:{B+4*s+3}], v2 offset:{512*s}")
    for s in range(16):
        wreg = WO+16*s if s<8 else (W2R+16*(s-8) if s<12 else WO+16*(s-12))
        if s==0: vm=16
        elif s<8: vm=None
        elif s<12: vm=16+7+4*(11-s)
        else: vm=7+4*(15-s)
        A(f"s_waitcnt lgkmcnt({min(7,15-s)})" + (f" vmcnt({vm})" if vm is not None else ""))
        for t in range(4):
            A(f"v_mfma_f32_16x16x32_bf16 v[{ACC+4*t}:{ACC+4*t+3}], v[{wreg+4*t}:{wreg+4*t+3}], v[{B+4*(s%8)}:{B+4*(s%8)+3}], {'0' if s==0 else f'v[{ACC+4*t}:{ACC+4*t+3}]'}")
        if s<8: A(f"ds_read_b128 v[{B+4*s}:{B+4*s+3}], v2 offset:{512*(s+8)}")
        if s==3:
            for s2 in range(12,16):
                for t in range(4): wo_load(WO+16*(s2-12)+4*t, t, s2)
        if s==7:
            E=WO+64
            A(f"""s_lshl_b32 s36, s24, 10
            v_lshlrev_b32 v4, 5, v1
            buffer_load_dwordx4 v[{E}:{E+3}], v3, s[8:11], s36 offen
            s_movk_i32 s37, 0x1000
            buffer_load_dwordx4 v[{E+4}:{E+7}], v4, s[4:7], s37 offen
            buffer_load_dwordx4 v[{E+8}:{E+11}], v4, s[4:7], s37 offen offset:16
            buffer_load_dwordx4 v[{E+12}:{E+15}], v4, s[4:7], s37 offen offset:2048
            buffer_load_dwordx4 v[{E+16}:{E+19}], v4, s[4:7], s37 offen offset:2064
            s_movk_i32 s37, 0x2000
            buffer_load_dwordx4 v[{E+20}:{E+23}], v4, s[4:7], s37 offen
            buffer_load_dwordx4 v[{E+24}:{E+27}], v4, s[4:7], s37 offen offset:16""")
    XR=E; GA=E+4; SB=E+12; CB=E+20
    A(f"""v_and_b32 v5, 15, v1
    v_mul_u32_u24 v5, 2064, v5
    v_lshrrev_b32 v6, 4, v1
    v_lshl_add_u32 v5, v6, 6, v5
    s_lshl_b32 s37, s3, 8
    v_add_u32 v5, s37, v5
    s_nop 3""")
    for t in range(4): A(f"ds_write_b128 v5, v[{ACC+4*t}:{ACC+4*t+3}] offset:{16*t}")
    A(f"""s_mul_i32 s37, s3, 2064
    v_add_u32 v5, s37, v4
    s_waitcnt lgkmcnt(0)
    s_barrier
    ds_read_b128 v[8:11], v5
    ds_read_b128 v[12:15], v5 offset:16
    s_waitcnt vmcnt(0) lgkmcnt(0)""")
    A.pack8(16,8); A.unpack8(8,16)
    for j in range(8): A(f"v_mul_f32 v{8+j}, v{8+j}, v{GA+j}")
    A.pack8(16,8); A.unpack8(8,16); A.unpack8(24,XR)
    for j in range(8): A(f"v_add_f32 v{8+j}, v{8+j}, v{24+j}")
    A.pack8(16,8); A.unpack8(8,16)
    A(f"s_add_u32 s36, s36, {hex(X1)}\nbuffer_store_dwordx4 v[16:19], v3, s[4:7], s36 offen")
    A.ln_rows([(8,20)], 24, 40)
    A.unpack8(8,20)
    for j in range(8): A(f"v_mul_f32 v{8+j}, v{8+j}, v{CB+j}")
    A.pack8(20,8); A.unpack8(8,20)
    for j in range(8): A(f"v_add_f32 v{8+j}, v{8+j}, v{SB+j}")
    A.pack8(20,8)
    A(f"""v_lshlrev_b32 v5, 9, v1
    s_add_u32 s25, s25, {hex(H2F)}
    buffer_store_dwordx4 v[20:23], v5, s[4:7], s25 offen""")
    A("k2_end:\ns_endpgm")
    return A.text(), kernel_desc("k2_kernel", 256), "; @launch kernel=k2_kernel grid=(256,1,1) block=(512,1,1) lds=143360"
```

```python
from common import *
def k3():
    A=Asm()
    W=128; ACC=64; B=8
    A("s_cmp_ge_u32 s2, 224\ns_cbranch_scc1 k3_end")
    A.ldptr(4,'ws')
    A("v_and_b32 v1, 63, v0\nv_lshrrev_b32 v2, 6, v0\ns_nop 0\nv_readfirstlane_b32 s3, v2")
    A(f"""s_and_b32 s20, s2, 3
    s_lshl_b32 s20, s20, 2
    s_bfe_u32 s21, s2, 0x20003
    s_add_u32 s20, s20, s21
    s_bfe_u32 s21, s2, 0x10002
    s_mul_i32 s21, s21, 7
    s_lshr_b32 s22, s2, 5
    s_add_u32 s21, s21, s22
    s_lshl_b32 s21, s21, 3
    s_add_u32 s21, s21, s3
    v_lshlrev_b32 v3, 4, v1
    v_add_u32 v4, 0x10000, v3
    s_lshr_b32 s22, s3, 1
    s_lshl_b32 s22, s22, 15
    s_and_b32 s23, s3, 1
    s_lshl_b32 s23, s23, 12
    s_add_u32 s22, s22, s23
    s_lshl_b32 s23, s20, 17
    s_add_u32 s23, s23, s22
    s_add_u32 s23, s23, {hex(H2F)}
    s_lshl_b32 s24, s21, 15
    s_add_u32 s24, s24, {hex(W13F)}
    s_waitcnt lgkmcnt(0)""")
    A.srd(4,WSEND)
    for q in range(4):
        A("s_mov_b32 m0, s22\ns_nop 0")
        for i in range(4): A(f"buffer_load_dwordx4 v3, s[4:7], s23 offen offset:{1024*i} lds")
        for s in range(8*q,8*q+8):
            A(f"buffer_load_dwordx4 v[{W+4*s}:{W+4*s+3}], v3, s[4:7], s24 offen offset:{(s%4)*1024}")
            if s%4==3: A("s_add_u32 s24, s24, 4096")
        if q<3: A("s_add_u32 s22, s22, 8192\ns_add_u32 s23, s23, 8192")
    def rd(s):
        for rt in range(4):
            b=B+16*(s%2)+4*rt
            A(f"ds_read_b128 v[{b}:{b+3}], v{3 if rt<2 else 4} offset:{(rt%2)*32768+s*1024}")
    for s in range(32):
        q=s//8
        if s%8==0:
            A(f"s_waitcnt vmcnt({12*(3-q)+8})\ns_barrier")
            rd(s)
        if s%8!=7: rd(s+1)
        A(f"s_waitcnt vmcnt({12*(3-q)+7-s%8})")
        for rt in range(4):
            b=B+16*(s%2)+4*rt
            A(f"s_waitcnt lgkmcnt({(4 if s%8!=7 else 0)+3-rt})")
            A(f"v_mfma_f32_32x32x16_bf16 v[{ACC+16*rt}:{ACC+16*rt+15}], v[{W+4*s}:{W+4*s+3}], v[{b}:{b+3}], {'0' if s==0 else f'v[{ACC+16*rt}:{ACC+16*rt+15}]'}")
    A(f"""s_lshl_b32 s22, s20, 2
    s_mul_i32 s22, s22, {112*1024}
    s_lshl_b32 s23, s21, 10
    s_add_u32 s22, s22, s23
    s_add_u32 s22, s22, {hex(HMF)}
    s_nop 7""")
    for rt in range(4):
        g=ACC+16*rt; t=8+8*(rt%2); p=24+4*rt
        for j in range(8): A(f"v_mul_f32 v{t+j}, 0xbfb8aa3b, v{g+j}")
        for j in range(8): A(f"v_exp_f32 v{t+j}, v{t+j}")
        for j in range(8): A(f"v_add_f32 v{t+j}, 1.0, v{t+j}")
        for j in range(8): A(f"v_rcp_f32 v{t+j}, v{t+j}")
        for j in range(8): A(f"v_mul_f32 v{g+j}, v{g+j}, v{g+8+j}")
        for j in range(8): A(f"v_mul_f32 v{t+j}, v{t+j}, v{g+j}")
        A.pack8(p,t)
        A(f"buffer_store_dwordx4 v[{p}:{p+3}], v3, s[4:7], s22 offen")
        if rt<3: A(f"s_add_u32 s22, s22, {112*1024}")
    A("k3_end:\ns_endpgm")
    return A.text(), kernel_desc("k3_kernel", 256), "; @launch kernel=k3_kernel grid=(224,1,1) block=(512,1,1) lds=131072"

def k4():
    A=Asm()
    R=16; NS=14
    A("s_cmp_ge_u32 s2, 256\ns_cbranch_scc1 k4_end")
    A.ldptr(4,'ws'); A.ldptr(8,'out')
    A("v_and_b32 v1, 63, v0\nv_lshrrev_b32 v2, 6, v0\ns_nop 0\nv_readfirstlane_b32 s3, v2")
    A(f"""s_and_b32 s20, s2, 3
    s_lshl_b32 s20, s20, 3
    s_bfe_u32 s21, s2, 0x30003
    s_add_u32 s20, s20, s21
    s_bfe_u32 s21, s2, 0x10002
    s_lshl_b32 s21, s21, 2
    s_lshr_b32 s22, s2, 6
    s_add_u32 s21, s21, s22
    v_lshlrev_b32 v3, 4, v1
    v_add_u32 v4, {112*1024}, v3
    s_mul_i32 s22, s3, {28*1024}
    s_mul_i32 s23, s20, {2*112*1024}
    s_add_u32 s23, s23, s22
    s_add_u32 s23, s23, {hex(HMF)}
    s_mul_i32 s24, s21, {2*112*1024}
    s_add_u32 s24, s24, s22
    s_add_u32 s24, s24, {hex(W2F)}
    s_waitcnt lgkmcnt(0)""")
    A.srd(4,WSEND); A.srd(8,2097152)
    def ld(s):
        r=R+16*(s%NS); o=(s%4)*1024
        A(f"""buffer_load_dwordx4 v[{r}:{r+3}], v3, s[4:7], s24 offen offset:{o}
        buffer_load_dwordx4 v[{r+4}:{r+7}], v3, s[4:7], s23 offen offset:{o}
        buffer_load_dwordx4 v[{r+8}:{r+11}], v4, s[4:7], s24 offen offset:{o}
        buffer_load_dwordx4 v[{r+12}:{r+15}], v4, s[4:7], s23 offen offset:{o}""")
        if s%4==3: A("s_add_u32 s23, s23, 4096\ns_add_u32 s24, s24, 4096")
    for s in range(NS): ld(s)
    A(f"""v_and_b32 v5, 31, v1
    v_lshlrev_b32 v5, 10, v5
    v_lshrrev_b32 v6, 5, v1
    v_lshl_add_u32 v5, v6, 5, v5
    v_lshlrev_b32 v6, 6, v6
    s_lshl_b32 s25, s20, 1
    s_and_b32 s26, s3, 1
    s_add_u32 s25, s25, s26
    s_lshl_b32 s25, s25, 15
    s_lshl_b32 s26, s21, 1
    s_lshr_b32 s27, s3, 1
    s_add_u32 s26, s26, s27
    s_lshl_b32 s27, s26, 6
    s_add_u32 s25, s25, s27
    s_lshl_b32 s26, s26, 7
    s_add_u32 s26, s26, {5*2048}
    s_add_u32 s27, s25, {hex(X1)}""")
    for s in range(28):
        r=R+16*(s%NS)
        rem = 4*(NS-1) if s<NS else 4*(27-s)+6
        if s==NS: pass
        A(f"s_waitcnt vmcnt({rem})")
        for ti,(a,b) in enumerate(((0,4),(0,12),(8,4),(8,12))):
            A(f"v_mfma_f32_32x32x16_bf16 a[{16*ti}:{16*ti+15}], v[{r+a}:{r+a+3}], v[{r+b}:{r+b+3}], {'0' if s==0 else f'a[{16*ti}:{16*ti+15}]'}")
        if s<NS: ld(s+NS)
        if s==NS-1:
            A("""buffer_load_dwordx4 v[8:11], v5, s[4:7], s27 offen
            buffer_load_dwordx4 v[12:15], v5, s[4:7], s27 offen offset:16
            buffer_load_dwordx4 v[240:243], v6, s[4:7], s26 offen
            buffer_load_dwordx4 v[244:247], v6, s[4:7], s26 offen offset:16
            buffer_load_dwordx4 v[248:251], v6, s[4:7], s26 offen offset:32
            buffer_load_dwordx4 v[252:255], v6, s[4:7], s26 offen offset:48""")
    A("s_lshl_b32 s22, s3, 12\nv_add_u32 v7, s22, v3\ns_lshl_b32 s22, s3, 14\nv_add_u32 v2, s22, v3\ns_nop 8")
    for ti in range(4):
        for i in range(4): A(f"ds_write_b128 v7, a[{16*ti+4*i}:{16*ti+4*i+3}] offset:{16384*ti+1024*i}")
    A("s_waitcnt lgkmcnt(0)\ns_barrier")
    for w in range(4):
        for i in range(4): A(f"ds_read_b128 v[{16+16*w+4*i}:{19+16*w+4*i}], v2 offset:{4096*w+1024*i}")
    A("s_waitcnt lgkmcnt(8)")
    for j in range(16): A(f"v_add_f32 v{16+j}, v{16+j}, v{32+j}")
    A("s_waitcnt lgkmcnt(0)")
    for j in range(16): A(f"v_add_f32 v{48+j}, v{48+j}, v{64+j}")
    for j in range(16): A(f"v_add_f32 v{16+j}, v{16+j}, v{48+j}")
    A.pack8(32,16); A.pack8(36,24); A.unpack8(16,32); A.unpack8(24,36)
    A("s_waitcnt vmcnt(0)")
    for j in range(16): A(f"v_mul_f32 v{16+j}, v{16+j}, v{240+j}")
    A.pack8(32,16); A.pack8(36,24); A.unpack8(16,32); A.unpack8(24,36)
    A.unpack8(48,8); A.unpack8(56,12)
    for j in range(16): A(f"v_add_f32 v{16+j}, v{16+j}, v{48+j}")
    A.pack8(32,16); A.pack8(36,24)
    A("buffer_store_dwordx4 v[32:35], v5, s[8:11], s25 offen\nbuffer_store_dwordx4 v[36:39], v5, s[8:11], s25 offen offset:16")
    A("k4_end:\ns_endpgm")
    return A.text(), kernel_desc("k4_kernel", 320, accum=256), "; @launch kernel=k4_kernel grid=(256,1,1) block=(256,1,1) lds=65536"
```

```python
from gen import *
def nop(i): return ("s_endpgm\n", kernel_desc(f"n{i}_kernel", 8), f"; @launch kernel=n{i}_kernel grid=(256,1,1) block=(256,1,1) lds=0")
ks=[k01.k0(), k01.k1(), k2.k2(), k34.k3(), k34.k4()]
build([nop(0),nop(1),nop(2),nop(3)]+ks,'va.s')
build(ks+[nop(0),nop(1),nop(2),nop(3)],'vb.s')
build(ks,'vc.s')
```

```python
NAME = "adaLN_cond__grouped_kv_mqa__glu_gated_swiglu__prompt"
KA = dict(x=0, wq=8, wk=16, wv=24, wo=32, bx=40, w1=48, w3=56, w2=64, c=72, wmod=80, out=88, dbg=96, ws=104)
MOD=0x0; XN=0x10000; WQF=0x210000; WKVF=0x290000; WOF=0x2A0000; QF=0x320000; KV=0x520000
X1=0x550000; H2F=0x750000; W13F=0x950000; W2F=0xCD0000; HMF=0xE90000; WSEND=0xE90000+64*112*1024; TS=2112

import os
STAMP=int(os.environ.get('STAMP','0'))
ST=os.environ.get('ST',' sc0 sc1')
class VM:
    def __init__(s): s.q=[]
    def add(s,tag,n=1): s.q+= [tag]*n
    def n(s,tag):
        last=max(i for i,t in enumerate(s.q) if t==tag)
        r=len(s.q)-1-last
        return min(r,63)
class Asm:
    def __init__(self): self.L=[]; self.ns=0
    def stamp(self, i=None):
        if not STAMP: return
        if i is None: i=self.ns
        self.ns=max(self.ns,i+1)
        if i==0: self("s_memrealtime s[92:93]")
        self(f"s_memtime s[{64+2*i}:{65+2*i}]\ns_waitcnt lgkmcnt(0)")
    def stamp_end(self, tag, wgs=(0,200), wave=0):
        if not STAMP: return
        self.stamp()
        self(f"s_memrealtime s[94:95]\ns_load_dwordx2 s[60:61], s[0:1], 96\ns_mov_b32 s62, 512\ns_mov_b32 s63, 0x00020000\ns_waitcnt lgkmcnt(0)")
        self(f"s_cmp_lg_u32 s3, {wave}\ns_cbranch_scc1 st_{tag}_x\ns_mov_b32 s59, 256\ns_cmp_eq_u32 s2, {wgs[0]}\ns_cbranch_scc1 st_{tag}_g\ns_mov_b32 s59, 384\ns_cmp_eq_u32 s2, {wgs[1]}\ns_cbranch_scc0 st_{tag}_x\nst_{tag}_g:\ns_mov_b64 exec, 1\nv_mov_b32 v0, 0")
        for i in range(1,self.ns):
            self(f"s_sub_u32 s58, s{64+2*i}, s64\nv_mov_b32 v1, s58\nbuffer_store_dword v1, v0, s[60:63], s59 offen offset:{4*i}")
        self(f"s_sub_u32 s58, s94, s92\nv_mov_b32 v1, s58\nbuffer_store_dword v1, v0, s[60:63], s59 offen\nv_mov_b32 v1, s92\nbuffer_store_dword v1, v0, s[60:63], s59 offen offset:120\nv_mov_b32 v1, s94\nbuffer_store_dword v1, v0, s[60:63], s59 offen offset:124\nst_{tag}_x:")
    def __call__(self, s):
        for l in s.strip('\n').split('\n'):
            l=l.strip()
            if l: self.L.append(('' if l.endswith(':') else '    ')+l)
    def text(self): return '\n'.join(self.L)+'\n'
    def ldptr(self, sreg, name):
        self(f"s_load_dwordx2 s[{sreg}:{sreg+1}], s[0:1], {KA[name]}")
    def srd(self, d, nbytes):
        self(f"s_mov_b32 s{d+2}, {hex(nbytes)}\ns_mov_b32 s{d+3}, 0x00020000")
    def wave_sum(self, vs):
        steps=["quad_perm:[1,0,3,2] row_mask:0xf","quad_perm:[2,3,0,1] row_mask:0xf","row_half_mirror row_mask:0xf",
               "row_mirror row_mask:0xf","row_bcast:15 row_mask:0xa","row_bcast:31 row_mask:0xc"]
        pad = max(0, 3-len(vs))
        for st in steps:
            if pad: self(f"s_nop {pad-1}" if st!=steps[0] else "s_nop 1")
            for v in vs: self(f"v_add_f32_dpp v{v}, v{v}, v{v} {st} bank_mask:0xf")
    def unpack8(self, dst, src):
        for i in range(4):
            self(f"v_lshlrev_b32 v{dst+2*i}, 16, v{src+i}\nv_and_b32 v{dst+2*i+1}, 0xffff0000, v{src+i}")
    def pack8(self, dst, src):
        for i in range(4):
            self(f"v_cvt_pk_bf16_f32 v{dst+i}, v{src+2*i}, v{src+2*i+1}")
    def ln_rows(self, rows, t, stmp):
        A=self
        for i,(f,p) in enumerate(rows):
            s=t+10*i
            A(f"v_add_f32 v{s}, v{f}, v{f+1}\nv_add_f32 v{s+1}, v{f+2}, v{f+3}\nv_add_f32 v{s+2}, v{f+4}, v{f+5}\nv_add_f32 v{s+3}, v{f+6}, v{f+7}")
            A(f"v_add_f32 v{s}, v{s}, v{s+1}\nv_add_f32 v{s+2}, v{s+2}, v{s+3}\nv_add_f32 v{s}, v{s}, v{s+2}")
        A.wave_sum([t+10*i for i in range(len(rows))])
        A("s_nop 0")
        for i in range(len(rows)): A(f"v_readlane_b32 s{stmp+2*i}, v{t+10*i}, 63")
        A("s_nop 1")
        for i,(f,p) in enumerate(rows):
            s=t+10*i
            A(f"v_mov_b32 v{s}, s{stmp+2*i}\nv_mul_f32 v{s}, 0x3b000000, v{s}")
            for j in range(8): A(f"v_sub_f32 v{s+2+j}, v{f+j}, v{s}")
            A(f"v_mul_f32 v{s+1}, v{s+2}, v{s+2}")
            for j in range(1,8): A(f"v_fmac_f32 v{s+1}, v{s+2+j}, v{s+2+j}")
        A.wave_sum([t+10*i+1 for i in range(len(rows))])
        A("s_nop 0")
        for i in range(len(rows)): A(f"v_readlane_b32 s{stmp+2*i+1}, v{t+10*i+1}, 63")
        for i,(f,p) in enumerate(rows):
            s=t+10*i
            A(f"v_cvt_pk_bf16_f32 v{s}, v{s}, v{s}\nv_and_b32 v{s}, 0xffff0000, v{s}")
            for j in range(8): A(f"v_sub_f32 v{s+2+j}, v{f+j}, v{s}")
            A.pack8(p, s+2)
            A.unpack8(s+2, p)
            A(f"""v_mov_b32 v{s+1}, s{stmp+2*i+1}
            v_mul_f32 v{s+1}, 0x3b000000, v{s+1}
            v_cvt_pk_bf16_f32 v{s+1}, v{s+1}, v{s+1}
            v_and_b32 v{s+1}, 0xffff0000, v{s+1}
            v_add_f32 v{s+1}, 0x3727c5ac, v{s+1}
            v_cvt_pk_bf16_f32 v{s+1}, v{s+1}, v{s+1}
            v_and_b32 v{s+1}, 0xffff0000, v{s+1}
            v_sqrt_f32 v{s+1}, v{s+1}
            s_nop 0
            v_cvt_pk_bf16_f32 v{s+1}, v{s+1}, v{s+1}
            v_and_b32 v{s+1}, 0xffff0000, v{s+1}
            v_rcp_f32 v{s+1}, v{s+1}
            s_nop 0""")
            for j in range(8): A(f"v_mul_f32 v{s+2+j}, v{s+2+j}, v{s+1}")
            A.pack8(p, s+2)
    def frag_gather(self, dst, tmp, va, vb, srd, soff, kstride):
        for j in range(8):
            v = va if j<4 else vb
            self(f"buffer_load_ushort v{tmp+j}, v{v}, s[{srd}:{srd+3}], {soff} offen offset:{(j%4)*kstride}")
    def frag_combine(self, dst, tmp):
        for i in range(4): self(f"v_lshl_or_b32 v{dst+i}, v{tmp+2*i+1}, 16, v{tmp+2*i}")

def kernel_header(label):
    return f".globl {label}\n.p2align 8\n.type {label},@function\n{label}:\n"
def kernel_desc(label, vgpr, accum=None, sgpr=96):
    if accum is None: accum=(vgpr+3)//4*4
    return f""".p2align 6
.amdhsa_kernel {label}
  .amdhsa_next_free_vgpr {vgpr}
  .amdhsa_next_free_sgpr {sgpr}
  .amdhsa_accum_offset {accum}
  .amdhsa_group_segment_fixed_size 0
  .amdhsa_kernarg_size 112
  .amdhsa_user_sgpr_count 2
  .amdhsa_user_sgpr_kernarg_segment_ptr 1
  .amdhsa_system_sgpr_workgroup_id_x 1
.end_amdhsa_kernel
"""
```

```python
from common import *
def perm_nlocal16(A, dst, m, t):
    A(f"""v_bfe_u32 v{dst}, v{m}, 2, 1
    v_lshlrev_b32 v{dst}, 4, v{dst}
    v_lshrrev_b32 v{t}, 3, v{m}
    v_lshl_add_u32 v{dst}, v{t}, 2, v{dst}
    v_and_b32 v{t}, 3, v{m}
    v_add_u32 v{dst}, v{dst}, v{t}""")
def perm_nlocal8(A, dst, m, t):
    A(f"""v_bfe_u32 v{dst}, v{m}, 2, 1
    v_lshlrev_b32 v{dst}, 3, v{dst}
    v_bfe_u32 v{t}, v{m}, 3, 1
    v_lshl_add_u32 v{dst}, v{t}, 2, v{dst}
    v_and_b32 v{t}, 3, v{m}
    v_add_u32 v{dst}, v{dst}, v{t}""")

def shuffle_ffn(A):
    dec="""v_lshrrev_b32 v4, 5, v1
    v_bfe_u32 v5, v1, 4, 1
    v_bfe_u32 v6, v1, 2, 2
    v_and_b32 v7, 3, v1
    v_lshlrev_b32 v3, 4, v1"""
    def tail(step, gstride):
        A("s_waitcnt vmcnt(0)\ns_barrier")
        for i in range(4):
            A(f"ds_read_b64_tr_b16 v[{16+4*i}:{17+4*i}], v8 offset:{step*i}\nds_read_b64_tr_b16 v[{18+4*i}:{19+4*i}], v9 offset:{step*i}")
        for i in range(4):
            A(f"s_waitcnt lgkmcnt({6-2*i})\nbuffer_store_dwordx4 v[{16+4*i}:{19+4*i}], v3, s[4:7], s24 offen{ST}\ns_add_u32 s24, s24, {gstride}")
        A("s_endpgm")
    A("k0_w2:")
    A.ldptr(8,'w2')
    A(dec)
    A(f"""s_sub_u32 s2, s2, 584
    s_lshl_b32 s20, s2, 14
    s_lshl_b32 s21, s3, 12
    s_add_u32 s20, s20, s21
    s_mul_i32 s21, s3, {4*1088}
    v_lshl_add_u32 v8, v4, 3, v6
    v_mul_u32_u24 v8, 1088, v8
    v_and_b32 v9, 1, v7
    v_lshl_add_u32 v8, v9, 5, v8
    v_lshrrev_b32 v9, 1, v7
    v_lshl_add_u32 v9, v5, 1, v9
    v_lshl_add_u32 v8, v9, 3, v8
    s_lshl_b32 s22, s3, 8
    v_add_u32 v8, s22, v8
    v_add_u32 v9, {4*1088}, v8
    s_mul_i32 s24, s3, {4*112*1024}
    s_lshl_b32 s23, s2, 10
    s_add_u32 s24, s24, s23
    s_add_u32 s24, s24, {hex(W2F)}
    s_waitcnt lgkmcnt(0)""")
    A.srd(4,WSEND); A.srd(8,1835008)
    for i in range(4):
        A(f"s_add_u32 m0, s21, {1088*i}\ns_add_u32 s23, s20, {1024*i}\nbuffer_load_dwordx4 v3, s[8:11], s23 offen lds")
    tail(64, 112*1024)
    A("k0_w13:")
    A("s_cmp_lt_u32 s3, 2\ns_cbranch_scc1 k0_w13a")
    A.ldptr(8,'w3'); A("s_branch k0_w13b\nk0_w13a:"); A.ldptr(8,'w1'); A("k0_w13b:")
    A(dec)
    A(f"""s_sub_u32 s2, s2, 360
    s_and_b32 s25, s2, 31
    s_lshr_b32 s26, s2, 5
    s_mul_i32 s20, s25, {16*3584}
    s_and_b32 s21, s3, 1
    s_mul_i32 s21, s21, {8*3584}
    s_add_u32 s20, s20, s21
    s_lshl_b32 s21, s26, 9
    s_add_u32 s20, s20, s21
    s_mul_i32 s21, s3, {4*1088}
    v_and_b32 v10, 31, v1
    v_lshlrev_b32 v10, 4, v10
    v_mul_u32_u24 v11, 3584, v4
    v_add_u32 v10, v10, v11
    v_lshrrev_b32 v8, 1, v6
    v_lshl_add_u32 v8, v4, 2, v8
    v_lshl_add_u32 v8, v5, 3, v8
    v_mul_u32_u24 v8, 1088, v8
    v_and_b32 v9, 1, v6
    v_lshl_add_u32 v8, v9, 9, v8
    v_and_b32 v9, 1, v7
    v_lshl_add_u32 v8, v9, 4, v8
    v_lshrrev_b32 v9, 1, v7
    v_lshl_add_u32 v8, v9, 3, v8
    s_lshl_b32 s22, s3, 7
    v_add_u32 v8, s22, v8
    v_add_u32 v9, {2*1088}, v8
    s_lshl_b32 s24, s26, 4
    s_lshl_b32 s23, s3, 2
    s_add_u32 s24, s24, s23
    s_lshl_b32 s24, s24, 5
    s_add_u32 s24, s24, s25
    s_lshl_b32 s24, s24, 10
    s_add_u32 s24, s24, {hex(W13F)}
    s_waitcnt lgkmcnt(0)""")
    A.srd(4,WSEND); A.srd(8,1835008)
    for i in range(4):
        A(f"s_add_u32 m0, s21, {1088*i}\ns_add_u32 s23, s20, {7168*i}\nbuffer_load_dwordx4 v10, s[8:11], s23 offen lds")
    tail(32, 32*1024)

def k0():
    A=Asm()
    A("s_cmp_ge_u32 s2, 360\ns_cbranch_scc1 k0_end")
    A.stamp()
    A.ldptr(4,'ws')
    A("v_and_b32 v1, 63, v0\nv_lshrrev_b32 v2, 6, v0\ns_nop 0\nv_readfirstlane_b32 s3, v2")
    A("s_cmp_lt_u32 s2, 96\ns_cbranch_scc1 k0_mod")
    A("s_cmp_lt_u32 s2, 104\ns_cbranch_scc1 k0_wkv")
    A.ldptr(8,'x'); A.ldptr(12,'wq'); A.ldptr(16,'wo')
    A("s_sub_u32 s2, s2, 104")
    A("s_lshl_b32 s20, s2, 2\ns_add_u32 s20, s20, s3")
    A("s_lshl_b32 s21, s20, 11")
    A("v_lshlrev_b32 v3, 4, v1")
    A("s_waitcnt lgkmcnt(0)")
    A.srd(4,WSEND); A.srd(8,2097152); A.srd(12,524288); A.srd(16,524288)
    A("buffer_load_dwordx4 v[4:7], v3, s[8:11], s21 offen\nbuffer_load_dwordx4 v[8:11], v3, s[8:11], s21 offen offset:1024")
    A("s_cmp_ge_u32 s20, 512\ns_cbranch_scc1 k0_wo")
    A("v_and_b32 v12, 31, v1")
    perm_nlocal16(A,13,12,14)
    A("""v_lshrrev_b32 v14, 5, v1
    v_lshlrev_b32 v14, 13, v14
    v_lshl_add_u32 v13, v13, 1, v14
    v_add_u32 v14, 4096, v13
    s_and_b32 s22, s20, 31
    s_lshl_b32 s22, s22, 14
    s_lshr_b32 s23, s20, 5
    s_lshl_b32 s23, s23, 6
    s_add_u32 s22, s22, s23""")
    A.frag_gather(0,16,13,14,12,'s22',1024)
    A(f"s_lshl_b32 s24, s20, 10\ns_add_u32 s24, s24, {hex(WQF)}\ns_branch k0_ln")
    A("k0_wo:")
    A("""s_sub_u32 s20, s20, 512
    v_and_b32 v12, 15, v1
    v_lshrrev_b32 v13, 2, v12
    v_lshlrev_b32 v13, 4, v13
    v_and_b32 v14, 3, v12
    v_add_u32 v13, v13, v14
    v_lshrrev_b32 v14, 4, v1
    v_lshlrev_b32 v14, 14, v14
    v_lshl_add_u32 v13, v13, 1, v14
    v_add_u32 v14, 8192, v13
    s_and_b32 s22, s20, 7
    s_lshl_b32 s22, s22, 16
    s_bfe_u32 s23, s20, 0x10003
    s_lshl_b32 s23, s23, 12
    s_add_u32 s22, s22, s23
    s_lshr_b32 s23, s20, 6
    s_lshl_b32 s23, s23, 7
    s_add_u32 s22, s22, s23
    s_bfe_u32 s23, s20, 0x20004
    s_lshl_b32 s23, s23, 3
    s_add_u32 s22, s22, s23""")
    A.frag_gather(0,16,13,14,16,'s22',1024)
    A(f"s_lshl_b32 s24, s20, 10\ns_add_u32 s24, s24, {hex(WOF)}")
    A("k0_ln:")
    A.stamp(1)
    A("s_waitcnt vmcnt(8)")
    A.stamp(2)
    A.unpack8(24,4); A.unpack8(32,8)
    A.ln_rows([(24,4),(32,8)], 40, 26)
    A(f"s_add_u32 s21, s21, {hex(XN)}")
    A("buffer_store_dwordx4 v[4:7], v3, s[4:7], s21 offen sc0 sc1\nbuffer_store_dwordx4 v[8:11], v3, s[4:7], s21 offen offset:1024 sc0 sc1")
    A.stamp(3)
    A("s_waitcnt vmcnt(2)")
    A.stamp(4)
    A.frag_combine(12,16)
    A("buffer_store_dwordx4 v[12:15], v3, s[4:7], s24 offen sc0 sc1")
    if STAMP==2:
        A("s_waitcnt vmcnt(0)")
        A.stamp_end('k0a',wgs=(0,250))
    A("s_endpgm")
    A.ns=1
    A("k0_wkv:")
    A.ldptr(8,'wk'); A.ldptr(12,'wv')
    A("s_sub_u32 s2, s2, 96\ns_lshl_b32 s20, s2, 2\ns_add_u32 s20, s20, s3")
    A("v_and_b32 v12, 15, v1")
    perm_nlocal8(A,13,12,14)
    A("""v_lshrrev_b32 v14, 5, v1
    v_lshlrev_b32 v14, 8, v14
    v_lshl_add_u32 v13, v13, 1, v14
    v_lshl_add_u32 v15, v12, 1, v14
    v_add_u32 v14, 128, v13
    v_add_u32 v12, 128, v15
    s_lshl_b32 s22, s20, 9
    v_lshlrev_b32 v3, 4, v1
    s_waitcnt lgkmcnt(0)""")
    A.srd(4,WSEND); A.srd(8,16384); A.srd(12,16384)
    A.frag_gather(0,16,13,14,8,'s22',32)
    A.frag_gather(0,24,15,12,12,'s22',32)
    A(f"s_lshl_b32 s24, s20, 10\ns_add_u32 s24, s24, {hex(WKVF)}")
    A("v_and_b32 v2, 16, v1\nv_cmp_eq_u32 vcc, 0, v2\ns_nop 1\ns_waitcnt vmcnt(0)")
    for j in range(8): A(f"v_cndmask_b32 v{16+j}, v{24+j}, v{16+j}, vcc")
    A.frag_combine(12,16)
    A("buffer_store_dwordx4 v[12:15], v3, s[4:7], s24 offen sc0 sc1\ns_endpgm")
    A("k0_mod:")
    A.ldptr(8,'c'); A.ldptr(12,'wmod')
    A("""v_lshrrev_b32 v2, 2, v0
    v_and_b32 v3, 3, v0
    v_mul_u32_u24 v4, 6144, v2
    v_lshl_add_u32 v4, v3, 4, v4
    v_lshlrev_b32 v5, 1, v2
    s_lshl_b32 s20, s2, 6
    s_waitcnt lgkmcnt(0)""")
    A.srd(4,WSEND); A.srd(8,1024); A.srd(12,3145728)
    for i in range(8): A(f"buffer_load_ushort v{8+i}, v5, s[8:11], 0 offen offset:{128*i}")
    for i in range(8):
        A(f"buffer_load_dwordx4 v[{16+4*i}:{19+4*i}], v4, s[12:15], s20 offen\ns_add_u32 s20, s20, {64*6144}")
    for j in range(8): A(f"v_mov_b32 v{48+j}, 0")
    A.stamp()
    A("s_waitcnt vmcnt(8)")
    A.stamp()
    for i in range(8): A(f"v_lshlrev_b32 v{8+i}, 16, v{8+i}\nv_mul_f32 v{56+i}, 0xbfb8aa3b, v{8+i}")
    for i in range(8): A(f"v_exp_f32 v{56+i}, v{56+i}")
    for i in range(8): A(f"v_add_f32 v{56+i}, 1.0, v{56+i}")
    for i in range(8): A(f"v_rcp_f32 v{56+i}, v{56+i}")
    for i in range(8): A(f"v_mul_f32 v{8+i}, v{8+i}, v{56+i}")
    for i in range(8): A(f"v_cvt_pk_bf16_f32 v{8+i}, v{8+i}, v{8+i}\nv_and_b32 v{8+i}, 0xffff0000, v{8+i}")
    for i in range(8):
        A(f"s_waitcnt vmcnt({7-i})")
        A.unpack8(56,16+4*i)
        for j in range(8): A(f"v_fmac_f32 v{48+j}, v{8+i}, v{56+j}")
    A.stamp()
    for st in ["row_ror:4","row_ror:8"]:
        for j in range(8): A(f"v_add_f32_dpp v{48+j}, v{48+j}, v{48+j} {st} row_mask:0xf bank_mask:0xf")
    A("""v_lshrrev_b32 v2, 4, v0
    v_lshlrev_b32 v2, 7, v2
    v_lshl_add_u32 v2, v3, 5, v2
    ds_write_b128 v2, v[48:51]
    ds_write_b128 v2, v[52:55] offset:16
    s_waitcnt lgkmcnt(0)
    s_barrier
    s_cmp_lg_u32 s3, 0
    s_cbranch_scc1 k0_end
    v_and_b32 v2, 31, v0
    v_lshlrev_b32 v2, 2, v2""")
    for i in range(16): A(f"ds_read_b32 v{8+i}, v2 offset:{128*i}")
    A("s_waitcnt lgkmcnt(0)")
    for st in (8,4,2,1):
        for i in range(st): A(f"v_add_f32 v{8+i}, v{8+i}, v{8+i+st}")
    A("""v_cvt_pk_bf16_f32 v8, v8, v8
    v_and_b32 v8, 0xffff0000, v8
    s_lshr_b32 s20, s2, 4
    s_cmp_eq_u32 s20, 1
    s_cselect_b32 s21, 1.0, 0
    s_cmp_eq_u32 s20, 4
    s_cselect_b32 s21, 1.0, s21
    v_add_f32 v8, s21, v8
    v_cvt_pk_bf16_f32 v8, v8, v8
    v_and_b32 v8, 0xffff0000, v8
    s_lshl_b32 s20, s2, 7
    buffer_store_dword v8, v2, s[4:7], s20 offen sc0 sc1""")
    if STAMP==1: A.stamp_end('k0',wgs=(0,90))
    A("k0_end:\ns_endpgm")
    return A.text(), kernel_desc("k0_kernel", 64), "; @launch kernel=k0_kernel grid=(360,1,1) block=(256,1,1) lds=2048"

def k1():
    A=Asm()
    A("s_cmp_ge_u32 s2, 256\ns_cbranch_scc1 k1_end")
    A.stamp()
    A.ldptr(4,'ws')
    A("v_and_b32 v1, 63, v0\nv_lshrrev_b32 v2, 6, v0\ns_nop 0\nv_readfirstlane_b32 s3, v2")
    A("""s_and_b32 s20, s2, 7
    s_lshr_b32 s21, s2, 5
    s_lshl_b32 s21, s21, 3
    s_add_u32 s20, s20, s21
    s_bfe_u32 s21, s2, 0x20003
    v_lshlrev_b32 v3, 4, v1
    v_and_b32 v4, 31, v1
    v_lshlrev_b32 v4, 4, v4
    v_lshrrev_b32 v5, 5, v1
    v_mul_u32_u24 v5, 528, v5
    v_add_u32 v4, v4, v5
    s_waitcnt lgkmcnt(0)""")
    A.srd(4,WSEND)
    A("s_cmp_eq_u32 s3, 4\ns_cbranch_scc1 k1_kv")
    W=128
    A(f"""s_lshl_b32 s22, s20, 15
    s_lshl_b32 s23, s3, 13
    s_add_u32 s22, s22, s23
    s_add_u32 s22, s22, {hex(XN)}
    v_lshlrev_b32 v6, 5, v1""")
    for i in range(8):
        A(f"buffer_load_dwordx4 v[{8+4*i}:{11+4*i}], v3, s[4:7], s22 offen offset:{(i%4)*1024}")
        if i==3: A("s_add_u32 s22, s22, 4096")
    A("""buffer_load_dwordx4 v[40:43], v6, s[4:7], 0 offen
    buffer_load_dwordx4 v[44:47], v6, s[4:7], 0 offen offset:16
    buffer_load_dwordx4 v[48:51], v6, s[4:7], 0 offen offset:2048
    buffer_load_dwordx4 v[52:55], v6, s[4:7], 0 offen offset:2064""")
    A(f"""s_lshl_b32 s23, s21, 2
    s_add_u32 s23, s23, s3
    s_lshl_b32 s24, s23, 15
    s_add_u32 s24, s24, {hex(WQF)}""")
    def wl(s):
        A(f"buffer_load_dwordx4 v[{W+4*s}:{W+4*s+3}], v3, s[4:7], s24 offen offset:{(s%4)*1024}")
        if s%4==3 and s<31: A("s_add_u32 s24, s24, 4096")
    PRE=int(os.environ.get('K1PRE','8'))
    for s in range(PRE): wl(s)
    nx=PRE
    A("v_mul_u32_u24 v7, 528, v1\ns_lshl_b32 s25, s3, 7\nv_add_u32 v7, s25, v7")
    A.stamp()
    A(f"s_waitcnt vmcnt({PRE})")
    A.stamp()
    for i in range(8):
        t = 56 + 8*(i%2); p=8+4*i
        A.unpack8(t,p)
        if nx<32: wl(nx); nx+=1
        for j in range(4): A(f"v_pk_mul_f32 v[{t+2*j}:{t+2*j+1}], v[{t+2*j}:{t+2*j+1}], v[{48+2*j}:{49+2*j}]")
        A.pack8(p,t)
        if nx<32: wl(nx); nx+=1
        A.unpack8(t,p)
        if nx<32: wl(nx); nx+=1
        for j in range(4): A(f"v_pk_add_f32 v[{t+2*j}:{t+2*j+1}], v[{t+2*j}:{t+2*j+1}], v[{40+2*j}:{41+2*j}]")
        A.pack8(p,t)
        A(f"ds_write_b128 v7, v[{p}:{p+3}] offset:{16*i}")
    while nx<32: wl(nx); nx+=1
    def mm(swap):
        A("s_waitcnt lgkmcnt(0)\ns_barrier")
        NB=8
        rd=lambda s: A(f"ds_read_b128 v[{8+4*(s%NB)}:{11+4*(s%NB)}], v4 offset:{1056*s}")
        for s in range(NB): rd(s)
        for s in range(32):
            A(f"s_waitcnt vmcnt({31-s}) lgkmcnt({min(NB-1,31-s)})")
            a=f"v[{W+4*s}:{W+4*s+3}]"; b=f"v[{8+4*(s%NB)}:{11+4*(s%NB)}]"
            if swap: a,b=b,a
            A(f"v_mfma_f32_32x32x16_bf16 v[64:79], {a}, {b}, {'0' if s==0 else 'v[64:79]'}")
            if s+NB<32: rd(s+NB)
        A("s_nop 15")
    A.stamp()
    mm(False)
    A.stamp()
    A.pack8(8,64); A.pack8(12,72); A.unpack8(64,8); A.unpack8(72,12)
    for i in range(16): A(f"v_mul_f32 v{64+i}, 0x3eb8aa3b, v{64+i}")
    A.pack8(8,64); A.pack8(12,72)
    A(f"""s_lshl_b32 s22, s20, 15
    s_lshl_b32 s23, s23, 11
    s_add_u32 s22, s22, s23
    s_add_u32 s22, s22, {hex(QF)}
    buffer_store_dwordx4 v[8:11], v3, s[4:7], s22 offen sc0 sc1
    buffer_store_dwordx4 v[12:15], v3, s[4:7], s22 offen offset:1024 sc0 sc1""")
    A.stamp_end('k1')
    A("s_endpgm")
    A("k1_kv:\ns_cmp_lt_u32 s21, 2\ns_cbranch_scc1 k1_kv2\ns_cmp_lg_u32 s2, 16\ns_cbranch_scc1 k1_end\nv_lshlrev_b32 v5, 7, v1\nv_mov_b32 v8, 0\ns_mov_b32 s24, 32768\nbuffer_store_dword v8, v5, s[4:7], s24 offen sc0 sc1\ns_mov_b32 s24, 40960\nbuffer_store_dword v8, v5, s[4:7], s24 offen sc0 sc1\ns_mov_b32 s24, 49152\nbuffer_store_dword v8, v5, s[4:7], s24 offen sc0 sc1\ns_mov_b32 s24, 57344\nbuffer_store_dword v8, v5, s[4:7], s24 offen sc0 sc1\ns_endpgm\nk1_kv2:")
    A(f"s_mov_b32 s24, {hex(WKVF)}")
    for s in range(32):
        A(f"buffer_load_dwordx4 v[{W+4*s}:{W+4*s+3}], v3, s[4:7], s24 offen offset:{(s%4)*1024}")
        if s%4==3 and s<31: A("s_add_u32 s24, s24, 4096")
    A(f"s_mul_i32 s22, s20, {TS}\ns_add_u32 s22, s22, {hex(KV)}\ns_cmp_eq_u32 s21, 1\ns_cbranch_scc1 k1_v")
    mm(False)
    A.pack8(8,64)
    A("buffer_store_dwordx4 v[8:11], v3, s[4:7], s22 offen sc0 sc1\ns_endpgm")
    A("k1_v:")
    mm(True)
    A.pack8(8,64); A.pack8(12,72)
    A("""v_and_b32 v5, 15, v1
    v_and_b32 v6, 16, v1
    v_cmp_ne_u32 vcc, 0, v6
    v_lshrrev_b32 v6, 5, v1
    v_add_u32 v7, -1, v6
    v_and_b32 v7, 0x3f803f80, v7
    v_mul_u32_u24 v6, 272, v6
    v_cndmask_b32 v5, 16, v5, vcc
    v_lshl_add_u32 v5, v5, 4, v6""")
    for i in range(8): A(f"v_cndmask_b32 v{8+i}, v7, v{8+i}, vcc")
    A("""buffer_store_dwordx4 v[8:11], v5, s[4:7], s22 offen offset:1024 sc0 sc1
    buffer_store_dwordx4 v[12:15], v5, s[4:7], s22 offen offset:1568 sc0 sc1""")
    A("k1_end:\ns_endpgm")
    return A.text(), kernel_desc("k1_kernel", 256), "; @launch kernel=k1_kernel grid=(256,1,1) block=(320,1,1) lds=33792"
```

```python
from common import *
PF=int(os.environ.get('PF','0'))
ST2=os.environ.get('ST2',' sc0 sc1')
PRIO=int(os.environ.get('PRIO','1'))
BAR=int(os.environ.get('BAR','1'))
def k2():
    A=Asm(); vm=VM()
    Q=4; NM=8; S=[24,40]; O=56; P0=72; P1=76; K=80; V0=84; V1=88; VA=92; DUM=93; T=94
    KAD=95; WO=96; NREG=10; NLDS=3
    STG=106496; LX=141312; LM=LX+8192; LDS_O=LM+6144; LDS_Y=98304; LDS_H=115712
    mf32="v_mfma_f32_32x32x16_bf16"
    r=lambda a,n=4: f"v[{a}:{a+n-1}]"
    A("s_cmp_ge_u32 s2, 256\ns_cbranch_scc1 k2_end")
    A.stamp()
    A.ldptr(4,'ws'); A.ldptr(8,'x'); A.ldptr(16,'w1'); A.ldptr(18,'w3'); A.ldptr(20,'w2')
    A("v_and_b32 v1, 63, v0\nv_lshrrev_b32 v2, 6, v0\ns_nop 0\nv_readfirstlane_b32 s3, v2")
    A(f"""s_lshl_b32 s24, s2, 3
    s_add_u32 s24, s24, s3
    v_lshlrev_b32 v3, 4, v1
    v_and_b32 v2, 31, v1
    v_lshrrev_b32 v{T}, 1, v2
    v_lshlrev_b32 v{T}, 11, v{T}
    v_and_b32 v{VA}, 1, v2
    v_lshl_add_u32 v{T}, v{VA}, 9, v{T}
    v_lshrrev_b32 v{VA}, 5, v1
    v_lshl_add_u32 v{T}, v{VA}, 10, v{T}
    s_lshr_b32 s25, s24, 5
    s_lshl_b32 s25, s25, 15
    s_and_b32 s26, s24, 31
    s_lshl_b32 s26, s26, 4
    s_add_u32 s25, s25, s26
    s_add_u32 s26, s25, {hex(QF)}
    s_lshl_b32 s27, s3, 10
    s_add_u32 s28, s27, {hex(KV)}
    s_mov_b32 m0, s27
    s_waitcnt lgkmcnt(0)""")
    A.srd(4,WSEND); A.srd(8,2097152)
    def kv(it):
        if it: A(f"s_add_u32 m0, s27, {8192*it}\ns_add_u32 s28, s28, 8192")
        A("buffer_load_dwordx4 v3, s[4:7], s28 offen lds"); vm.add(('kv',it))
    kv(0); kv(1)
    A(f"buffer_load_dwordx4 {r(Q)}, v{T}, s[4:7], s26 offen"); vm.add('q')
    A(f"""v_cmp_lt_u32 vcc, 16, v2
    v_cmp_eq_u32 s[30:31], 16, v2
    v_min_u32 v2, 16, v2
    v_cndmask_b32 v{VA}, v{VA}, 1, vcc
    v_cndmask_b32 v{VA}, v{VA}, 0, s[30:31]
    v_mul_u32_u24 v{VA}, 272, v{VA}
    v_lshl_add_u32 v{VA}, v2, 4, v{VA}
    v_add_u32 v{VA}, 1024, v{VA}
    v_mov_b32 v{KAD}, v3
    s_lshl_b32 s38, s3, 16
    s_add_u32 s38, s38, {hex(WOF)}
    s_lshl_b32 s40, s3, 12""")
    for i in range(4): A(f"v_mov_b32 v{P1+i}, 0")
    SH=240; SA=236
    A(f"""s_lshr_b32 s45, s3, 2
    s_lshl_b32 s46, s45, 8
    s_add_u32 s46, s46, s2
    s_and_b32 s47, s3, 3
    s_mul_i32 s48, s45, {17408}
    s_add_u32 s48, s48, {STG}
    v_lshrrev_b32 v{SH}, 5, v1
    v_bfe_u32 v{SH+1}, v1, 4, 1
    v_bfe_u32 v{SH+2}, v1, 2, 2
    v_and_b32 v{SH+3}, 3, v1
    s_mov_b32 s14, 1835008
    s_mov_b32 s15, 0x00020000
    s_cmp_ge_u32 s46, 224
    s_cbranch_scc1 k2_shw2
    s_cmp_lt_u32 s47, 2
    s_cselect_b32 s12, s16, s18
    s_cselect_b32 s13, s17, s19
    s_and_b32 s50, s46, 31
    s_lshr_b32 s51, s46, 5
    s_mul_i32 s52, s50, {16*3584}
    s_and_b32 s53, s47, 1
    s_mul_i32 s53, s53, {8*3584}
    s_add_u32 s52, s52, s53
    s_lshl_b32 s53, s51, 9
    s_add_u32 s52, s52, s53
    s_movk_i32 s53, 7168
    v_and_b32 v{SA+2}, 31, v1
    v_lshlrev_b32 v{SA+2}, 4, v{SA+2}
    v_mul_u32_u24 v{SA}, 3584, v{SH}
    v_add_u32 v{SA+2}, v{SA+2}, v{SA}
    v_lshrrev_b32 v{SA}, 1, v{SH+2}
    v_lshl_add_u32 v{SA}, v{SH}, 2, v{SA}
    v_lshl_add_u32 v{SA}, v{SH+1}, 3, v{SA}
    v_mul_u32_u24 v{SA}, 1088, v{SA}
    v_and_b32 v{SA+1}, 1, v{SH+2}
    v_lshl_add_u32 v{SA}, v{SA+1}, 9, v{SA}
    v_and_b32 v{SA+1}, 1, v{SH+3}
    v_lshl_add_u32 v{SA}, v{SA+1}, 4, v{SA}
    v_lshrrev_b32 v{SA+1}, 1, v{SH+3}
    v_lshl_add_u32 v{SA}, v{SA+1}, 3, v{SA}
    s_lshr_b32 s54, s47, 1
    s_lshl_b32 s54, s54, 3
    s_and_b32 s55, s47, 1
    s_add_u32 s54, s54, s55
    s_lshl_b32 s55, s54, 5
    s_add_u32 s55, s55, s48
    v_add_u32 v{SA}, s55, v{SA}
    v_add_u32 v{SA+1}, {2*1088}, v{SA}
    s_lshl_b32 s55, s51, 4
    s_add_u32 s54, s54, s55
    s_lshl_b32 s54, s54, 5
    s_add_u32 s54, s54, s50
    s_lshl_b32 s54, s54, 10
    s_add_u32 s54, s54, {hex(W13F)}
    s_mov_b32 s55, {64*1024}
    s_branch k2_shdone
    k2_shw2:
    s_mov_b32 s12, s20
    s_mov_b32 s13, s21
    s_sub_u32 s50, s46, 224
    s_lshl_b32 s52, s50, 14
    s_lshl_b32 s53, s47, 12
    s_add_u32 s52, s52, s53
    s_movk_i32 s53, 1024
    v_mov_b32 v{SA+2}, v3
    v_lshl_add_u32 v{SA}, v{SH}, 3, v{SH+2}
    v_mul_u32_u24 v{SA}, 1088, v{SA}
    v_and_b32 v{SA+1}, 1, v{SH+3}
    v_lshl_add_u32 v{SA}, v{SA+1}, 5, v{SA}
    v_lshrrev_b32 v{SA+1}, 1, v{SH+3}
    v_lshl_add_u32 v{SA+1}, v{SH+1}, 1, v{SA+1}
    v_lshl_add_u32 v{SA}, v{SA+1}, 3, v{SA}
    s_lshl_b32 s55, s47, 8
    s_add_u32 s55, s55, s48
    v_add_u32 v{SA}, s55, v{SA}
    v_add_u32 v{SA+1}, {4*1088}, v{SA}
    s_mul_i32 s54, s47, {4*112*1024}
    s_lshl_b32 s55, s50, 10
    s_add_u32 s54, s54, s55
    s_add_u32 s54, s54, {hex(W2F)}
    s_mov_b32 s55, {112*1024}
    s_cmp_lt_u32 s46, 336
    s_cbranch_scc1 k2_shdone
    s_mov_b32 s54, 0x40000000
    k2_shdone:
    s_mul_i32 s49, s47, {4*1088}
    s_add_u32 s48, s48, s49""")
    A.stamp()
    A(f"s_waitcnt vmcnt({vm.n('q')})\ns_barrier")
    for j in range(2,6): kv(j)
    A.stamp()
    bufs=[S[0],S[1],O,NM]
    for t in range(4): A(f"ds_read_b128 {r(WO+4*t)}, v3 offset:{TS*t}")
    for t in range(4): A(f"s_waitcnt lgkmcnt({3-t})\n{mf32} {r(bufs[t],16)}, {r(WO+4*t)}, {r(Q)}, 0")
    A(f"ds_read_b128 {r(K)}, v3 offset:{TS}\nds_read_b128 {r(V1)}, v{VA} offset:544\nds_read_b128 {r(V0)}, v{VA}\ns_nop 3")
    for t in range(4):
        b=bufs[t]
        for i in range(8):
            d=P0+(i%2)
            A(f"v_max3_f32 v{d}, v{b+2*i}, v{b+2*i+1}, v{d}" if (t or i>1) else f"v_max_f32 v{d}, v{b+2*i}, v{b+2*i+1}")
    def finish_max(off):
        A(f"""v_max_f32 v{P0}, v{P0}, v{P0+1}
        v_mov_b32 v{P0+1}, v{P0}
        s_nop 1
        v_permlane32_swap_b32 v{P0}, v{P0+1}
        s_nop 1
        v_max_f32 v{P0}, v{P0}, v{P0+1}
        v_sub_f32 v{NM}, {off}, v{P0}""")
        for i in range(1,16): A(f"v_mov_b32 v{NM+i}, v{NM}")
        for i in range(16): A(f"v_mov_b32 v{O+i}, 0")
    finish_max("0xc2b00000")
    A(f"{mf32} {r(S[0],16)}, {r(WO)}, {r(Q)}, {r(NM,16)}\ns_nop 11")
    A.stamp()
    def wo_reg(reg,t,s,tag):
        off=t*16384+s*1024
        A(f"s_add_u32 s39, s38, {off & ~4095}\nbuffer_load_dwordx4 {r(reg)}, v3, s[4:7], s39 offen offset:{off&4095}"); vm.add(tag)
    def wo_lds(t,s):
        off=t*16384+s*1024
        A(f"s_add_u32 m0, s40, {(s-NREG)*32768+t*1024}\ns_add_u32 s39, s38, {off}\nbuffer_load_dwordx4 v3, s[4:7], s39 offen lds"); vm.add('wol')
    def pf(sreg,off):
        A(f"buffer_load_dword v{DUM}, v{T}, s[4:7], s{sreg} offen" + (f"\ns_add_u32 s{sreg}, s{sreg}, {off}" if off else "")); vm.add('pf')
    def sh_ld(i):
        A(f"s_add_u32 m0, s48, {1088*i}\ns_nop 0\nbuffer_load_dwordx4 v{SA+2}, s[12:15], s52 offen lds\ns_add_u32 s52, s52, s53"); vm.add('sh')
    def sh_rd(i):
        A(f"ds_read_b64_tr_b16 v[{SH+4*i}:{SH+4*i+1}], v{SA} offset:{64*i}\nds_read_b64_tr_b16 v[{SH+4*i+2}:{SH+4*i+3}], v{SA+1} offset:{64*i}")
    def sh_st(i):
        A(f"buffer_store_dwordx4 {r(SH+4*i)}, v3, s[4:7], s54 offen{ST}\ns_add_u32 s54, s54, s55"); vm.add('shs')
    def xm_ld(i):
        if i==0: A(f"s_add_u32 m0, s27, {LX}\ns_lshl_b32 s36, s24, 10\nbuffer_load_dwordx4 v3, s[8:11], s36 offen lds")
        else: A(f"s_min_u32 s37, s27, {5*1024}\ns_add_u32 m0, s37, {LM}\ns_add_u32 s37, s37, 4096\nbuffer_load_dwordx4 v3, s[4:7], s37 offen lds")
        vm.add('xm')
    slotA={}; slotB={}
    for i in range(4): slotA[2*i]=lambda i=i: sh_ld(i)
    for j in range(6,13): slotB[j-6]=lambda j=j: kv(j)
    slotA[9]=lambda: xm_ld(0); slotA[11]=lambda: xm_ld(1)
    for i in range(4):
        slotA[20+i]=lambda i=i: sh_rd(i)
        slotA[24+i]=lambda i=i: sh_st(i)
        slotA[32+i]=lambda i=i: kv(13+i)
    for i in range(8): slotA[36+i]=lambda i=i: wo_lds(i%4,NREG+i//4)
    for i in range(4): slotA[48+i]=lambda i=i: wo_lds(i,NREG+2)
    for i in range(40): slotB[10+i]=lambda i=i: wo_reg(WO+4*i,i%4,i//4,'wor')
    bars={4:('kv',5),20:'xm',32:None,48:('kv',16)}
    base={KAD:0,VA:0}
    def la(reg,off):
        if off-base[reg]>65000:
            A(f"v_add_u32 v{reg}, {30*TS}, v{reg}"); base[reg]+=30*TS
        return f"v{reg} offset:{off-base[reg]}"
    seg=[0,4,20,32,48,64]
    for t in range(64):
        s=S[t%2]; sn=S[(t+1)%2]
        e=lambda i: A(f"v_exp_f32 v{s+i}, v{s+i}")
        c=lambda i: A(f"v_cvt_pk_bf16_f32 v{P0+i}, v{s+2*i}, v{s+2*i+1}")
        if t in bars:
            A("s_waitcnt lgkmcnt(1)" + (f" vmcnt({vm.n(bars[t])})" if bars[t] else "") + "\ns_barrier")
        if t in (48,): A.stamp()
        if PRIO:
            a=max(x for x in seg if x<=t); b=min(x for x in seg if x>t); q=(b-a)//4
            if (t-a)%q==0: A(f"s_setprio {3-(t-a)//q}")
        e(0); e(1)
        A(f"s_waitcnt lgkmcnt(1)\n{mf32} {r(O,16)}, {r(V1)}, {r(P1)}, {r(O,16)}")
        if t in slotA: slotA[t]()
        e(2); e(3); c(0); e(4); e(5)
        if t<63: A(f"{mf32} {r(sn,16)}, {r(K)}, {r(Q)}, {r(NM,16)}")
        if t<62: A(f"ds_read_b128 {r(K)}, {la(KAD,TS*(t+2))}")
        c(1); e(6); e(7)
        if t in slotB: slotB[t]()
        c(2); e(8); e(9); c(3); e(10); e(11)
        A(f"s_waitcnt lgkmcnt({1 if t<62 else 0})\n{mf32} {r(O,16)}, {r(V0)}, {r(P0)}, {r(O,16)}")
        A(f"ds_read_b128 {r(V1)}, {la(VA,TS*t+544)}")
        A(f"ds_read_b128 {r(V0)}, {la(VA,TS*min(t+1,63))}")
        c(4); e(12); e(13); c(5); e(14); e(15); c(6); c(7)
    VBASE=base[VA]
    A(f"s_waitcnt lgkmcnt(0)\ns_nop 0\n{mf32} {r(O,16)}, {r(V1)}, {r(P1)}, {r(O,16)}")
    A.stamp()
    A("s_nop 11")
    A(f"""v_max3_f32 v{P0}, |v{O}|, |v{O+1}|, |v{O+2}|
    v_max3_f32 v{P0}, |v{O+3}|, |v{O+4}|, v{P0}
    v_max3_f32 v{P0}, |v{O+5}|, |v{O+6}|, v{P0}
    v_max_f32 v{P0}, |v{O+7}|, v{P0}
    v_add_f32 v{P0+1}, v{O}, v{O+1}
    v_add_f32 v{P0+2}, v{O+2}, v{O+3}
    v_add_f32 v{P0+3}, v{O+4}, v{O+5}
    v_add_f32 v{P1}, v{O+6}, v{O+7}
    v_add_f32 v{P0+1}, v{P0+1}, v{P0+2}
    v_add_f32 v{P0+3}, v{P0+3}, v{P1}
    v_add_f32 v{P0+1}, v{P0+1}, v{P0+3}
    v_add_f32 v{P0+1}, v{P0+1}, v{O+8}
    v_mov_b32 v{P0+2}, 0x207
    v_cmp_class_f32 s[36:37], v{P0+1}, v{P0+2}
    v_cmp_gt_f32 vcc, 0x0f800000, v{P0}
    s_nop 1
    s_or_b64 s[36:37], s[36:37], vcc
    s_cmp_lg_u64 s[36:37], 0
    s_cbranch_scc1 k2_slow""")
    if os.environ.get('FORCESLOW'): A("s_branch k2_slow")
    A("k2_tail:")
    LATE=8
    A(f"v_mov_b32 v{P1}, v{O+8}\ns_nop 1\nv_permlane32_swap_b32 v{O+8}, v{P1}\ns_nop 1\nv_rcp_f32 v{P1}, v{O+8}\nv_lshlrev_b32 v2, 7, v1")
    for i in range(8): A(f"v_mul_f32 v{O+i}, v{O+i}, v{P1}")
    A.pack8(P0,O)
    A(f"""s_lshl_b32 s37, s3, 4
    s_add_u32 s37, s37, {LDS_O}
    v_add_u32 v2, s37, v2
    ds_write_b128 v2, {r(P0)}
    v_lshlrev_b32 v{T}, 5, v1
    v_lshrrev_b32 v2, 4, v1
    v_lshlrev_b32 v2, 7, v2
    v_and_b32 v{DUM}, 7, v1
    v_lshl_add_u32 v2, v{DUM}, 4, v2
    v_add_u32 v2, {LDS_O}, v2
    v_add_u32 v{VA}, s40, v3
    v_add_u32 v{KAD}, 0x10000, v{VA}""")
    late=[(s,t) for s in range(NREG+NLDS,16) for t in range(4)]
    def late_ld(n):
        for _ in range(n):
            if late:
                s,t=late.pop(0); wo_reg(LATE+16*(s-NREG-NLDS)+4*t,t,s,('late',s))
    late_ld(2)
    A("s_waitcnt lgkmcnt(0)\ns_barrier")
    A.stamp()
    XR=4; GA=160; SB=168; CB=176; ACC=56; Bf=[72,76,80,84,88]; NBF=5
    lq=[]
    def dsr(reg,addr,off,tag): A(f"ds_read_b128 {r(reg)}, v{addr} offset:{off}"); lq.append(tag)
    def lw(tag): return min(15,len(lq)-1-max(i for i,t in enumerate(lq) if t==tag))
    for s in range(NBF): dsr(Bf[s],2,512*s,('b',s))
    for s in range(16):
        if s<NREG: wreg=WO+16*s
        elif s<NREG+NLDS: wreg=WO+16*(s-NREG)
        else: wreg=LATE+16*(s-NREG-NLDS)
        n=lw(('b',s))
        if NREG<=s<NREG+NLDS: n=min(n,lw(('w',s)))
        w=f"s_waitcnt lgkmcnt({n})"
        if s==0: w+=f" vmcnt({min(vm.n('wol'),vm.n('wor'))})"
        if s>=NREG+NLDS: w+=f" vmcnt({vm.n(('late',s))})"
        A(w)
        for t in range(4):
            A(f"v_mfma_f32_16x16x32_bf16 {r(ACC+4*t)}, {r(wreg+4*t)}, {r(Bf[s%NBF])}, {'0' if s==0 else r(ACC+4*t)}")
        late_ld(2)
        if s+NBF<16: dsr(Bf[s%NBF],2,512*(s+NBF),('b',s+NBF))
        if 2<=s<2+2*NLDS:
            s2=(s-2)//2
            for t in (0,1) if s%2==0 else (2,3): dsr(WO+16*s2+4*t,VA if s2<2 else KAD,(s2%2)*32768+t*1024,('w',NREG+s2))
        if s==12:
            A(f"v_add_u32 v{DUM}, {LM}, v{T}\ns_add_u32 s37, s27, {LX}\nv_add_u32 v{VA}, s37, v3")
            dsr(XR,VA,0,'e')
            for i in range(6): dsr(GA+4*i,DUM,(i//2)*2048+(i%2)*16,'e')
    A.stamp()
    A(f"""v_and_b32 v2, 15, v1
    v_mul_u32_u24 v2, 2064, v2
    v_lshrrev_b32 v{DUM}, 4, v1
    v_lshl_add_u32 v2, v{DUM}, 6, v2
    s_lshl_b32 s37, s3, 8
    s_add_u32 s37, s37, {LDS_Y}
    v_add_u32 v2, s37, v2
    s_mov_b32 s42, 0x00ff00ff
    s_mov_b32 s43, 0x00ff00ff
    s_mov_b64 exec, s[42:43]""")
    for t in range(4): A(f"ds_write_b128 v2, {r(ACC+4*t)} offset:{16*t}")
    A(f"""s_mov_b64 exec, -1
    s_mul_i32 s37, s3, 2064
    s_add_u32 s37, s37, {LDS_Y}
    v_add_u32 v2, s37, v{T}
    s_waitcnt lgkmcnt(0)
    s_barrier
    ds_read_b128 v[24:27], v2
    ds_read_b128 v[28:31], v2 offset:16""")
    A.stamp()
    A.unpack8(40,XR)
    A("s_waitcnt lgkmcnt(0)")
    for j in range(8): A(f"v_fmac_f32 v{40+j}, v{24+j}, v{GA+j}")
    A.pack8(32,40); A.unpack8(24,32)
    A(f"s_lshl_b32 s36, s24, 10\ns_add_u32 s36, s36, {hex(X1)}\nbuffer_store_dwordx4 v[32:35], v3, s[4:7], s36 offen{ST2}")
    A("v_add_f32 v40, v24, v25\nv_add_f32 v41, v26, v27\nv_add_f32 v42, v28, v29\nv_add_f32 v43, v30, v31\nv_add_f32 v40, v40, v41\nv_add_f32 v42, v42, v43\nv_add_f32 v40, v40, v42")
    A.wave_sum([40])
    A.stamp()
    A("v_mul_f32 v40, 0x3b000000, v40\ns_nop 0\nv_readlane_b32 s44, v40, 63\ns_nop 1")
    for j in range(8): A(f"v_subrev_f32 v{24+j}, s44, v{24+j}")
    A("v_mul_f32 v40, v24, v24\nv_mul_f32 v41, v25, v25")
    for j in range(2,8): A(f"v_fmac_f32 v{40+j%2}, v{24+j}, v{24+j}")
    A("v_add_f32 v40, v40, v41")
    A.wave_sum([40])
    A("""v_mov_b32 v41, 0x3727c5ac
    v_fmac_f32 v41, 0x3b000000, v40
    v_rsq_f32 v41, v41
    v_mul_u32_u24 v2, 144, v1
    s_lshl_b32 s37, s3, 4
    v_readlane_b32 s44, v41, 63""")
    A(f"s_add_u32 s37, s37, {LDS_H}\ns_mul_i32 s27, s3, {8*144}\ns_add_u32 s27, s27, {LDS_H}")
    for j in range(8): A(f"v_mul_f32 v{24+j}, v{24+j}, v{CB+j}")
    for j in range(8): A(f"v_fmac_f32 v{SB+j}, s44, v{24+j}")
    A.pack8(36,SB)
    A.stamp()
    A(f"""v_add_u32 v2, s37, v2
    ds_write_b128 v2, v[36:39]
    v_add_u32 v2, s27, v3
    v_lshrrev_b32 v40, 3, v1
    v_lshl_add_u32 v2, v40, 4, v2
    v_lshlrev_b32 v40, 9, v40
    v_and_b32 v41, 7, v1
    v_lshl_add_u32 v40, v41, 4, v40
    s_lshl_b32 s37, s3, 12
    s_lshl_b32 s36, s3, 4
    s_sub_u32 s25, s25, s36
    s_add_u32 s25, s25, s37
    s_add_u32 s25, s25, {hex(H2F)}
    s_waitcnt lgkmcnt(0)
    s_barrier
    ds_read_b128 v[36:39], v2
    s_waitcnt lgkmcnt(0)
    buffer_store_dwordx4 v[36:39], v40, s[4:7], s25 offen{ST2}""")
    A.stamp_end('k2',wave=int(os.environ.get('SW','0')))
    A("k2_end:\ns_endpgm")
    A(f"k2_slow:\nv_subrev_u32 v{VA}, {VBASE}, v{VA}")
    A(f"v_mov_b32 v{P0}, 0xff800000\nv_mov_b32 v{P0+1}, 0xff800000\ns_mov_b32 s41, {hex(KV)}")
    A(f"""k2_s1:
    buffer_load_dwordx4 {r(K)}, v3, s[4:7], s41 offen
    s_waitcnt vmcnt(0)
    {mf32} {r(S[0],16)}, {r(K)}, {r(Q)}, 0
    s_add_u32 s41, s41, {TS}
    s_nop 11""")
    for i in range(8): A(f"v_max3_f32 v{P0}, v{S[0]+2*i}, v{S[0]+2*i+1}, v{P0}")
    A(f"s_cmp_lt_u32 s41, {hex(KV+64*TS)}\ns_cbranch_scc1 k2_s1")
    finish_max("0")
    A(f"""s_mov_b32 s41, {hex(KV)}
    k2_s2:
    buffer_load_dwordx4 {r(K)}, v3, s[4:7], s41 offen
    buffer_load_dwordx4 {r(V0)}, v{VA}, s[4:7], s41 offen
    buffer_load_dwordx4 {r(V1)}, v{VA}, s[4:7], s41 offen offset:544
    s_waitcnt vmcnt(0)
    {mf32} {r(S[0],16)}, {r(K)}, {r(Q)}, {r(NM,16)}
    s_add_u32 s41, s41, {TS}
    s_nop 11""")
    for i in range(16): A(f"v_exp_f32 v{S[0]+i}, v{S[0]+i}")
    for i in range(8): A(f"v_cvt_pk_bf16_f32 v{P0+i}, v{S[0]+2*i}, v{S[0]+2*i+1}")
    A(f"""s_nop 1
    {mf32} {r(O,16)}, {r(V0)}, {r(P0)}, {r(O,16)}
    {mf32} {r(O,16)}, {r(V1)}, {r(P1)}, {r(O,16)}
    s_cmp_lt_u32 s41, {hex(KV+64*TS)}
    s_nop 7
    s_cbranch_scc1 k2_s2
    s_nop 7
    s_branch k2_tail""")
    return A.text(), kernel_desc("k2_kernel", 256), "; @launch kernel=k2_kernel grid=(256,1,1) block=(512,1,1) lds=163840"
```

```python
from common import *
def k3():
    A=Asm()
    W=128; ACC=64; B=8
    A("s_cmp_ge_u32 s2, 224\ns_cbranch_scc1 k3_end")
    A.stamp()
    A.ldptr(4,'ws')
    A("v_and_b32 v1, 63, v0\nv_lshrrev_b32 v2, 6, v0\ns_nop 0\nv_readfirstlane_b32 s3, v2")
    A(f"""s_and_b32 s20, s2, 3
    s_lshl_b32 s20, s20, 2
    s_bfe_u32 s21, s2, 0x20003
    s_add_u32 s20, s20, s21
    s_bfe_u32 s21, s2, 0x10002
    s_mul_i32 s21, s21, 7
    s_lshr_b32 s22, s2, 5
    s_add_u32 s21, s21, s22
    s_lshl_b32 s21, s21, 3
    s_add_u32 s21, s21, s3
    v_lshlrev_b32 v3, 4, v1
    v_add_u32 v4, 0x10000, v3
    s_lshr_b32 s22, s3, 1
    s_lshl_b32 s22, s22, 15
    s_and_b32 s23, s3, 1
    s_lshl_b32 s23, s23, 12
    s_add_u32 s22, s22, s23
    s_lshl_b32 s23, s20, 17
    s_add_u32 s23, s23, s22
    s_add_u32 s23, s23, {hex(H2F)}
    s_lshl_b32 s24, s21, 15
    s_add_u32 s24, s24, {hex(W13F)}
    s_waitcnt lgkmcnt(0)""")
    A.srd(4,WSEND)
    for q in range(4):
        A("s_mov_b32 m0, s22\ns_nop 0")
        for i in range(4): A(f"buffer_load_dwordx4 v3, s[4:7], s23 offen offset:{1024*i} lds")
        for s in range(8*q,8*q+8):
            A(f"buffer_load_dwordx4 v[{W+4*s}:{W+4*s+3}], v3, s[4:7], s24 offen offset:{(s%4)*1024}")
            if s%4==3: A("s_add_u32 s24, s24, 4096")
        if q<3: A("s_add_u32 s22, s22, 8192\ns_add_u32 s23, s23, 8192")
    def rd(s):
        for rt in range(4):
            b=B+16*(s%2)+4*rt
            A(f"ds_read_b128 v[{b}:{b+3}], v{3 if rt<2 else 4} offset:{(rt%2)*32768+s*1024}")
    for s in range(32):
        q=s//8
        if s%8==0:
            A.stamp()
            A(f"s_waitcnt vmcnt({12*(3-q)+8})\ns_barrier")
            A.stamp()
            rd(s)
        if s%8!=7: rd(s+1)
        A(f"s_waitcnt vmcnt({12*(3-q)+7-s%8})")
        for rt in range(4):
            b=B+16*(s%2)+4*rt
            A(f"s_waitcnt lgkmcnt({(4 if s%8!=7 else 0)+3-rt})")
            A(f"v_mfma_f32_32x32x16_bf16 v[{ACC+16*rt}:{ACC+16*rt+15}], v[{W+4*s}:{W+4*s+3}], v[{b}:{b+3}], {'0' if s==0 else f'v[{ACC+16*rt}:{ACC+16*rt+15}]'}")
    A.stamp()
    A(f"""s_lshl_b32 s22, s20, 2
    s_mul_i32 s22, s22, {112*1024}
    s_lshl_b32 s23, s21, 10
    s_add_u32 s22, s22, s23
    s_add_u32 s22, s22, {hex(HMF)}
    s_nop 7""")
    for rt in range(4):
        g=ACC+16*rt; t=8+8*(rt%2); p=24+4*rt
        for j in range(8): A(f"v_mul_f32 v{t+j}, 0xbfb8aa3b, v{g+j}")
        for j in range(8): A(f"v_exp_f32 v{t+j}, v{t+j}")
        for j in range(8): A(f"v_add_f32 v{t+j}, 1.0, v{t+j}")
        for j in range(8): A(f"v_rcp_f32 v{t+j}, v{t+j}")
        for j in range(8): A(f"v_mul_f32 v{g+j}, v{g+j}, v{g+8+j}")
        for j in range(8): A(f"v_mul_f32 v{t+j}, v{t+j}, v{g+j}")
        A.pack8(p,t)
        A(f"buffer_store_dwordx4 v[{p}:{p+3}], v3, s[4:7], s22 offen")
        if rt<3: A(f"s_add_u32 s22, s22, {112*1024}")
    A.stamp_end('k3')
    A("k3_end:\ns_endpgm")
    return A.text(), kernel_desc("k3_kernel", 256), "; @launch kernel=k3_kernel grid=(224,1,1) block=(512,1,1) lds=131072"

def k4():
    A=Asm()
    R=16; NS=int(os.environ.get('NS','7'))
    A("s_cmp_ge_u32 s2, 256\ns_cbranch_scc1 k4_end")
    A.stamp()
    A.ldptr(4,'ws'); A.ldptr(8,'out')
    A("v_and_b32 v1, 63, v0\nv_lshrrev_b32 v2, 6, v0\ns_nop 0\nv_readfirstlane_b32 s3, v2")
    A(f"""s_and_b32 s20, s2, 3
    s_lshl_b32 s20, s20, 3
    s_bfe_u32 s21, s2, 0x30003
    s_add_u32 s20, s20, s21
    s_bfe_u32 s21, s2, 0x10002
    s_lshl_b32 s21, s21, 2
    s_lshr_b32 s22, s2, 6
    s_add_u32 s21, s21, s22
    v_lshlrev_b32 v3, 4, v1
    v_add_u32 v4, {112*1024}, v3
    s_mul_i32 s22, s3, {28*1024}
    s_mul_i32 s23, s20, {2*112*1024}
    s_add_u32 s23, s23, s22
    s_add_u32 s23, s23, {hex(HMF)}
    s_mul_i32 s24, s21, {2*112*1024}
    s_add_u32 s24, s24, s22
    s_add_u32 s24, s24, {hex(W2F)}
    s_waitcnt lgkmcnt(0)""")
    A.srd(4,WSEND); A.srd(8,2097152)
    def ld(s):
        r=R+16*(s%NS); o=(s%4)*1024
        A(f"""buffer_load_dwordx4 v[{r}:{r+3}], v3, s[4:7], s24 offen offset:{o}
        buffer_load_dwordx4 v[{r+4}:{r+7}], v3, s[4:7], s23 offen offset:{o}
        buffer_load_dwordx4 v[{r+8}:{r+11}], v4, s[4:7], s24 offen offset:{o}
        buffer_load_dwordx4 v[{r+12}:{r+15}], v4, s[4:7], s23 offen offset:{o}""")
        if s%4==3: A("s_add_u32 s23, s23, 4096\ns_add_u32 s24, s24, 4096")
    for s in range(NS): ld(s)
    A(f"""v_and_b32 v5, 31, v1
    v_lshlrev_b32 v5, 10, v5
    v_lshrrev_b32 v6, 5, v1
    v_lshl_add_u32 v5, v6, 5, v5
    v_lshlrev_b32 v6, 6, v6
    s_lshl_b32 s25, s20, 1
    s_and_b32 s26, s3, 1
    s_add_u32 s25, s25, s26
    s_lshl_b32 s25, s25, 15
    s_lshl_b32 s26, s21, 1
    s_lshr_b32 s27, s3, 1
    s_add_u32 s26, s26, s27
    s_lshl_b32 s27, s26, 6
    s_add_u32 s25, s25, s27
    s_lshl_b32 s26, s26, 7
    s_add_u32 s26, s26, {5*2048}
    s_add_u32 s27, s25, {hex(X1)}""")
    for s in range(28):
        r=R+16*(s%NS)
        rem = 4*(NS-1) if s<28-NS else 4*(27-s)+6
        if s%7==0: A.stamp()
        A(f"s_waitcnt vmcnt({rem})")
        if s==0: A.stamp()
        for ti,(a,b) in enumerate(((0,4),(0,12),(8,4),(8,12))):
            A(f"v_mfma_f32_32x32x16_bf16 a[{16*ti}:{16*ti+15}], v[{r+a}:{r+a+3}], v[{r+b}:{r+b+3}], {'0' if s==0 else f'a[{16*ti}:{16*ti+15}]'}")
        if s+NS<28: ld(s+NS)
        if s==27-NS:
            A("""buffer_load_dwordx4 v[8:11], v5, s[4:7], s27 offen
            buffer_load_dwordx4 v[12:15], v5, s[4:7], s27 offen offset:16
            buffer_load_dwordx4 v[240:243], v6, s[4:7], s26 offen
            buffer_load_dwordx4 v[244:247], v6, s[4:7], s26 offen offset:16
            buffer_load_dwordx4 v[248:251], v6, s[4:7], s26 offen offset:32
            buffer_load_dwordx4 v[252:255], v6, s[4:7], s26 offen offset:48""")
    A.stamp()
    A("s_lshl_b32 s22, s3, 12\nv_add_u32 v7, s22, v3\ns_lshl_b32 s22, s3, 14\nv_add_u32 v2, s22, v3\ns_nop 4")
    for ti in range(4):
        for i in range(4): A(f"ds_write_b128 v7, a[{16*ti+4*i}:{16*ti+4*i+3}] offset:{16384*ti+1024*i}")
    A("s_waitcnt vmcnt(0)")
    A.unpack8(80,8); A.unpack8(88,12)
    A("s_waitcnt lgkmcnt(0)\ns_barrier")
    for i in range(4):
        for w in range(4): A(f"ds_read_b128 v[{16+16*w+4*i}:{19+16*w+4*i}], v2 offset:{4096*w+1024*i}")
    for i in range(4):
        A(f"s_waitcnt lgkmcnt({12-4*i})")
        for j in range(4*i,4*i+4): A(f"v_add_f32 v{16+j}, v{16+j}, v{32+j}\nv_add_f32 v{48+j}, v{48+j}, v{64+j}")
        for j in range(4*i,4*i+4): A(f"v_add_f32 v{16+j}, v{16+j}, v{48+j}")
        for j in range(4*i,4*i+4): A(f"v_fmac_f32 v{80+j}, v{16+j}, v{240+j}")
        if i%2:
            A.pack8(96+2*(i-1),80+4*(i-1))
            A(f"buffer_store_dwordx4 v[{96+2*(i-1)}:{99+2*(i-1)}], v5, s[8:11], s25 offen offset:{8*(i-1)}")
    A.stamp_end('k4')
    A("k4_end:\ns_endpgm")
    return A.text(), kernel_desc("k4_kernel", 320, accum=256), "; @launch kernel=k4_kernel grid=(256,1,1) block=(256,1,1) lds=65536"
```

```python
from common import *
class VM:
    def __init__(s): s.q=[]
    def add(s,tag,n=1): s.q+= [tag]*n
    def n(s,tag):
        last=max(i for i,t in enumerate(s.q) if t==tag)
        return len(s.q)-1-last
ST=os.environ.get('ST3',' sc0 sc1')
def silu_ops(g,t,p):
    ops=[]
    for j in range(8): ops.append(f"v_mul_f32 v{t+j}, 0xbfb8aa3b, v{g+j}")
    for j in range(8): ops.append(f"v_exp_f32 v{t+j}, v{t+j}")
    for j in range(8): ops.append(f"v_add_f32 v{t+j}, 1.0, v{t+j}")
    for j in range(8): ops.append(f"v_rcp_f32 v{t+j}, v{t+j}")
    for j in range(8): ops.append(f"v_mul_f32 v{g+j}, v{g+j}, v{g+8+j}")
    for j in range(8): ops.append(f"v_mul_f32 v{t+j}, v{t+j}, v{g+j}")
    for i in range(4): ops.append(f"v_cvt_pk_bf16_f32 v{p+i}, v{t+2*i}, v{t+2*i+1}")
    return ops
def k3f():
    A=Asm(); vm=VM()
    W=128; ACC=64; B=8
    A("s_cmp_ge_u32 s2, 256\ns_cbranch_scc1 k3_end")
    A.stamp()
    A.ldptr(4,'ws'); A.ldptr(8,'out')
    A("v_and_b32 v1, 63, v0\nv_lshrrev_b32 v2, 6, v0\ns_nop 0\nv_readfirstlane_b32 s3, v2")
    A(f"""s_and_b32 s20, s2, 3
    s_lshl_b32 s20, s20, 2
    s_bfe_u32 s21, s2, 0x20003
    s_add_u32 s20, s20, s21
    s_bfe_u32 s21, s2, 0x10002
    s_mul_i32 s21, s21, 7
    s_lshr_b32 s22, s2, 5
    s_add_u32 s21, s21, s22
    s_lshl_b32 s21, s21, 3
    s_add_u32 s21, s21, s3
    v_lshlrev_b32 v3, 4, v1
    v_add_u32 v4, 0x10000, v3
    s_lshl_b32 s22, s3, 10
    s_lshl_b32 s23, s20, 17
    s_add_u32 s23, s23, s22
    s_add_u32 s23, s23, {hex(H2F)}
    s_lshl_b32 s24, s21, 15
    s_add_u32 s24, s24, {hex(W13F)}
    s_lshl_b32 s25, s20, 2
    s_mul_i32 s25, s25, {112*1024}
    s_lshl_b32 s26, s21, 10
    s_add_u32 s25, s25, s26
    s_add_u32 s25, s25, {hex(HMF)}
    s_waitcnt lgkmcnt(0)""")
    A.srd(4,WSEND); A.srd(8,2097152)
    PFY=int(os.environ.get('PFY','14')); PFS=int(os.environ.get('PFS','22')); PFY0=int(os.environ.get('PFY0','0'))
    M2 = '''s_bfe_u32 s41, s2, 0x30003
    s_add_u32 s40, s40, s41
    s_bfe_u32 s41, s2, 0x10002
    s_lshl_b32 s41, s41, 2
    s_lshr_b32 s42, s2, 6
    s_add_u32 s41, s41, s42
''' if os.environ.get('MAP','1')=='0' else 's_bfe_u32 s41, s2, 0x20003\ns_add_u32 s40, s40, s41\ns_and_b32 s41, s2, 4\ns_add_u32 s40, s40, s41\ns_lshr_b32 s41, s2, 5'
    A(f"""s_and_b32 s40, s2, 3
    s_lshl_b32 s40, s40, 3
    {M2}
    v_add_u32 v7, {112*1024}, v3
    s_mul_i32 s42, s3, {7*1024}
    s_bfe_u32 s50, s2, 0x10002
    s_mul_i32 s50, s50, {56*1024}
    s_add_u32 s42, s42, s50
    s_lshl_b32 s50, s50, 1
    s_sub_u32 s50, {56*1024}, s50
    s_mul_i32 s32, s40, {2*112*1024}
    s_add_u32 s32, s32, s42
    s_add_u32 s32, s32, {hex(HMF)}
    s_mul_i32 s36, s41, {2*112*1024}
    s_add_u32 s36, s36, s42
    s_add_u32 s36, s36, {hex(W2F)}
    s_add_u32 s33, s32, 4096
    s_add_u32 s34, s32, s50
    s_add_u32 s35, s34, 4096
    s_add_u32 s37, s36, 4096
    s_add_u32 s38, s36, s50
    s_add_u32 s39, s38, 4096
    s_lshr_b32 s50, s2, 7
    s_mul_i32 s50, s50, {112*1024}
    s_bfe_u32 s51, s2, 0x10006
    s_mul_i32 s51, s51, 3584
    s_add_u32 s50, s50, s51
    s_add_u32 s50, s50, s34
    s_lshr_b32 s43, s40, 1
    s_lshl_b32 s43, s43, 8
    s_add_u32 s43, s43, 0x8000
    s_lshl_b32 s44, s20, 8
    s_add_u32 s44, s44, 0x8000
    v_and_b32 v5, 31, v1
    v_lshlrev_b32 v5, 10, v5
    v_lshrrev_b32 v6, 5, v1
    v_lshl_add_u32 v5, v6, 5, v5
    v_lshlrev_b32 v6, 6, v6
    s_lshl_b32 s45, s40, 1
    s_bfe_u32 s46, s3, 0x10001
    s_add_u32 s45, s45, s46
    s_lshl_b32 s45, s45, 15
    s_lshl_b32 s46, s41, 1
    s_lshr_b32 s47, s3, 2
    s_add_u32 s46, s46, s47
    s_lshl_b32 s46, s46, 2
    s_and_b32 s47, s3, 1
    s_add_u32 s46, s46, s47
    s_lshl_b32 s47, s46, 4
    s_add_u32 s45, s45, s47
    s_lshl_b32 s46, s46, 5
    s_add_u32 s46, s46, {5*2048}
    s_add_u32 s47, s45, {hex(X1)}
    s_cmp_ge_u32 s2, 224
    s_cbranch_scc1 k3_np""")
    def w2l(j):
        s_,nt=j//2,j%2
        return f"buffer_load_dwordx4 v[{W+4*j}:{W+4*j+3}], v{7 if nt else 3}, s[4:7], s{36+2*(s_//7)+(s_%7)//4} offen offset:{((s_%7)%4)*1024}"
    def dma(rt,q,tag):
        off=rt*32768+q*8192
        A(f"s_add_u32 m0, s22, {off}\ns_add_u32 s26, s23, {off}\nbuffer_load_dwordx4 v3, s[4:7], s26 offen lds"); vm.add(tag)
    def wl(s):
        A(f"buffer_load_dwordx4 v[{W+4*s}:{W+4*s+3}], v3, s[4:7], s24 offen offset:{(s%4)*1024}"); vm.add(('w',s))
        if s%4==3: A("s_add_u32 s24, s24, 4096")
    L=[]
    for q in range(4):
        L+= [lambda rt=rt,q=q: dma(rt,q,('a',q)) for rt in range(3)]
        L+= [lambda s=s: wl(s) for s in range(8*q,8*q+8)]
    L+= [lambda q=q: dma(3,q,'a3') for q in range(4)]
    PRE=int(os.environ.get('K3PRE','11'))
    for f in L[:PRE]: f()
    L=L[PRE:]
    def rd(s):
        for rt in range(3):
            b=B+12*(s%2)+4*rt
            A(f"ds_read_b128 v[{b}:{b+3}], v{3 if rt<2 else 4} offset:{(rt%2)*32768+s*1024}")
    for s in range(32):
        q=s//8
        if s%8==0:
            A(f"s_waitcnt vmcnt({vm.n(('a',q))})\ns_barrier")
            if s==0: A.stamp()
            rd(s)
        if s%8!=7: rd(s+1)
        A(f"s_waitcnt vmcnt({vm.n(('w',s))})")
        for rt in range(3):
            b=B+12*(s%2)+4*rt
            A(f"s_waitcnt lgkmcnt({(3 if s%8!=7 else 0)+2-rt})")
            A(f"v_mfma_f32_32x32x16_bf16 v[{ACC+16*rt}:{ACC+16*rt+15}], v[{W+4*s}:{W+4*s+3}], v[{b}:{b+3}], {'0' if s==0 else f'v[{ACC+16*rt}:{ACC+16*rt+15}]'}")
            if rt<(2 if s%2 else 1) and L: L.pop(0)()
    assert not L
    A.stamp()
    A(f"s_waitcnt vmcnt(0)\ns_barrier")
    E=[]
    for rt in range(3):
        E+=silu_ops(ACC+16*rt,32,40+4*rt)
        E+=[f"buffer_store_dwordx4 v[{40+4*rt}:{43+4*rt}], v3, s[4:7], s25 offen{ST}\ns_add_u32 s25, s25, {112*1024}"]
    NB=6; YS=int(os.environ.get('YS','2')); assert PFY0+(PFY-1)*YS<32
    rd3=lambda s: A(f"ds_read_b128 v[{B+4*(s%NB)}:{B+4*(s%NB)+3}], v4 offset:{32768+s*1024}")
    for s in range(NB): rd3(s)
    A("s_nop 1")
    a3=ACC+48
    for s in range(32):
        b=B+4*(s%NB)
        A(f"s_waitcnt lgkmcnt({min(NB-1,31-s)})")
        A(f"v_mfma_f32_32x32x16_bf16 v[{a3}:{a3+15}], v[{W+4*s}:{W+4*s+3}], v[{b}:{b+3}], {'0' if s==0 else f'v[{a3}:{a3+15}]'}")
        if s+NB<32: rd3(s+NB)
        if s>=PFY0 and (s-PFY0)%YS==0 and (s-PFY0)//YS<PFY: A(w2l((s-PFY0)//YS))
        n = 5 if s<29 else 0
        for _ in range(n):
            if E: A(E.pop(0))
    while E: A(E.pop(0))
    A.stamp()
    for o in silu_ops(a3,32,52): A(o)
    A(f"buffer_store_dwordx4 v[52:55], v3, s[4:7], s25 offen{ST}")
    A.stamp()
    A("s_waitcnt vmcnt(0)\ns_barrier")
    A.stamp()
    FLAG=int(os.environ.get('FLAG','1')); PALL=int(os.environ.get('PALL','0'))
    A(f"""s_cmp_lg_u32 s3, 0
    s_cbranch_scc1 k3_sy
    s_mov_b64 exec, 1
    s_lshr_b32 s48, s21, 1
    v_mov_b32 v8, {'s48' if FLAG else '0'}
    v_mov_b32 v9, 1
    {'buffer_store_dword v9, v8, s[4:7], s44 offen sc0 sc1' if FLAG else 'buffer_atomic_add v9, v8, s[4:7], s44 offen sc1'}
    s_mov_b64 exec, -1
    s_branch k3_sy
    k3_np:""")
    NPF=int(os.environ.get('NPF','1'))
    if NPF:
        A(f"""s_bfe_u32 s48, s2, 0x20003
        s_lshl_b32 s48, s48, 3
        s_add_u32 s48, s48, s3
        s_mul_i32 s48, s48, {56*1024}
        s_add_u32 s48, s48, {hex(W2F)}
        v_lshlrev_b32 v4, 7, v1""")
        for r in range(7):
            A("buffer_load_dword v252, v4, s[4:7], s48 offen\ns_add_u32 s48, s48, 8192")
            if (r+1)%NPF==0: A("s_waitcnt vmcnt(0)")
    for j in range(PFY): A(w2l(j))
    A("k3_sy:\nv_min_u32 v4, 27, v1\nv_lshlrev_b32 v4, 7, v4")
    vm=VM()
    A("""buffer_load_dwordx4 v[52:55], v5, s[4:7], s47 offen
    buffer_load_dwordx4 v[56:59], v6, s[4:7], s46 offen
    buffer_load_dwordx4 v[60:63], v6, s[4:7], s46 offen offset:16""")
    PW=int(os.environ.get('PW','0'))
    chk = "v_cmp_eq_u32 vcc, 0, v11\ns_cbranch_vccnz k3_pl" if FLAG else "v_readfirstlane_b32 s49, v11\ns_cmp_lt_u32 s49, 14\ns_cbranch_scc1 k3_pl"
    poll=f"""s_mov_b32 s48, 200000
    {'v_min_u32 v10, 13, v1' if FLAG else 'v_mov_b32 v10, 0'}
    v_lshlrev_b32 v10, 2, v10
    k3_pl:
    buffer_load_dword v11, v10, s[4:7], s43 offen sc0 sc1
    s_sub_u32 s48, s48, 1
    s_cmp_eq_u32 s48, 0
    s_cbranch_scc1 k3_pd
    s_waitcnt vmcnt(0)
    {chk}
    k3_pd:
    s_waitcnt vmcnt(0)"""
    if PALL:
        for j in range(PFY,PFS): A(w2l(j))
        A(poll)
    else:
        A(f"s_cmp_eq_u32 s3, {PW}\ns_cbranch_scc1 k3_poll")
        for j in range(PFY,PFS): A(w2l(j))
        A("s_barrier\ns_branch k3_go\nk3_poll:")
        A(poll); A("s_barrier")
        for j in range(PFY,PFS): A(w2l(j))
    A("k3_go:")
    A.stamp()
    slots=[8+4*i for i in range(11)]+[240,244,248]
    def hl(s_):
        for j in (2*s_,2*s_+1):
            if j>=PFS: A(w2l(j)); vm.add(('h',s_))
        for rt in range(2):
            r=slots[(2*s_+rt)%14]
            A(f"buffer_load_dwordx4 v[{r}:{r+3}], v{7 if rt else 3}, s[4:7], s{32+2*(s_//7)+(s_%7)//4} offen offset:{((s_%7)%4)*1024}"); vm.add(('h',s_))
    CP=int(os.environ.get('CP','9'))
    for s_ in range(7):
        if s_==CP: A("buffer_load_dword v252, v4, s[4:7], s50 offen"); vm.add('cp')
        hl(s_)
    for s_ in range(14):
        A(f"s_waitcnt vmcnt({vm.n(('h',s_))})")
        if s_ in (0,7): A.stamp()
        for ti in range(4):
            a=W+4*(2*s_+(ti>>1)); b=slots[(2*s_+(ti&1))%14]; c=ACC+16*ti
            A(f"v_mfma_f32_32x32x16_bf16 v[{c}:{c+15}], v[{a}:{a+3}], v[{b}:{b+3}], {'0' if s_==0 else f'v[{c}:{c+15}]'}")
        if s_+7<14: hl(s_+7)
    A.stamp()
    A("s_lshl_b32 s22, s3, 10\nv_add_u32 v8, s22, v3\nv_add_u32 v9, 0x10000, v8\ns_lshl_b32 s22, s3, 14\nv_add_u32 v2, s22, v3")
    A.unpack8(128,52)
    A("s_nop 4")
    for ti in range(4):
        if ti==3: A("s_nop 7")
        for i in range(4): A(f"ds_write_b128 v{8+(ti>>1)}, v[{ACC+16*ti+4*i}:{ACC+16*ti+4*i+3}] offset:{32768*(ti&1)+8192*i}")
    A("s_waitcnt lgkmcnt(0)\ns_barrier")
    for i in range(2):
        for w in range(8): A(f"ds_read_b128 v[{ACC+32*i+4*w}:{ACC+32*i+4*w+3}], v2 offset:{8192*i+1024*w}")
    for i in range(2):
        b=ACC+32*i
        A(f"s_waitcnt lgkmcnt({12-8*i})")
        for j in range(4): A(f"v_add_f32 v{b+j}, v{b+j}, v{b+4+j}\nv_add_f32 v{b+8+j}, v{b+8+j}, v{b+12+j}")
        A(f"s_waitcnt lgkmcnt({8-8*i})")
        for j in range(4): A(f"v_add_f32 v{b+16+j}, v{b+16+j}, v{b+20+j}\nv_add_f32 v{b+24+j}, v{b+24+j}, v{b+28+j}")
        for j in range(4): A(f"v_add_f32 v{b+j}, v{b+j}, v{b+8+j}\nv_add_f32 v{b+16+j}, v{b+16+j}, v{b+24+j}")
        for j in range(4): A(f"v_add_f32 v{b+j}, v{b+j}, v{b+16+j}")
        for j in range(4): A(f"v_fmac_f32 v{128+4*i+j}, v{b+j}, v{56+4*i+j}")
    A.pack8(136,128)
    A("buffer_store_dwordx4 v[136:139], v5, s[8:11], s45 offen")
    A.stamp_end('k3',wave=int(os.environ.get('SW3','0')))
    A("k3_end:\ns_endpgm")
    return A.text(), kernel_desc("k3_kernel", 256), "; @launch kernel=k3_kernel grid=(256,1,1) block=(512,1,1) lds=131072"
```

```python
from common import *
class VM:
    def __init__(s): s.q=[]
    def add(s,tag,n=1): s.q+= [tag]*n
    def n(s,tag):
        last=max(i for i,t in enumerate(s.q) if t==tag)
        return len(s.q)-1-last
ST=os.environ.get('ST3',' sc0 sc1')
def silu_ops(g,t,p):
    ops=[]
    for j in range(8): ops.append(f"v_mul_f32 v{t+j}, 0xbfb8aa3b, v{g+j}")
    for j in range(8): ops.append(f"v_exp_f32 v{t+j}, v{t+j}")
    for j in range(8): ops.append(f"v_add_f32 v{t+j}, 1.0, v{t+j}")
    for j in range(8): ops.append(f"v_rcp_f32 v{t+j}, v{t+j}")
    for j in range(8): ops.append(f"v_mul_f32 v{g+j}, v{g+j}, v{g+8+j}")
    for j in range(8): ops.append(f"v_mul_f32 v{t+j}, v{t+j}, v{g+j}")
    for i in range(4): ops.append(f"v_cvt_pk_bf16_f32 v{p+i}, v{t+2*i}, v{t+2*i+1}")
    return ops
def k3():
    A=Asm(); vm=VM()
    W=128; ACC=64; B=8
    A("s_cmp_ge_u32 s2, 224\ns_cbranch_scc1 k3_end")
    A.stamp()
    A.ldptr(4,'ws')
    A("v_and_b32 v1, 63, v0\nv_lshrrev_b32 v2, 6, v0\ns_nop 0\nv_readfirstlane_b32 s3, v2")
    A(f"""s_and_b32 s20, s2, 3
    s_lshl_b32 s20, s20, 2
    s_bfe_u32 s21, s2, 0x20003
    s_add_u32 s20, s20, s21
    s_bfe_u32 s21, s2, 0x10002
    s_mul_i32 s21, s21, 7
    s_lshr_b32 s22, s2, 5
    s_add_u32 s21, s21, s22
    s_lshl_b32 s21, s21, 3
    s_add_u32 s21, s21, s3
    v_lshlrev_b32 v3, 4, v1
    v_add_u32 v4, 0x10000, v3
    s_lshl_b32 s22, s3, 10
    s_lshl_b32 s23, s20, 17
    s_add_u32 s23, s23, s22
    s_add_u32 s23, s23, {hex(H2F)}
    s_lshl_b32 s24, s21, 15
    s_add_u32 s24, s24, {hex(W13F)}
    s_lshl_b32 s25, s20, 2
    s_mul_i32 s25, s25, {112*1024}
    s_lshl_b32 s26, s21, 10
    s_add_u32 s25, s25, s26
    s_add_u32 s25, s25, {hex(HMF)}
    s_waitcnt lgkmcnt(0)""")
    A.srd(4,WSEND)
    def dma(rt,q,tag):
        off=rt*32768+q*8192
        A(f"s_add_u32 m0, s22, {off}\ns_add_u32 s26, s23, {off}\nbuffer_load_dwordx4 v3, s[4:7], s26 offen lds"); vm.add(tag)
    def wl(s):
        A(f"buffer_load_dwordx4 v[{W+4*s}:{W+4*s+3}], v3, s[4:7], s24 offen offset:{(s%4)*1024}"); vm.add(('w',s))
        if s%4==3: A("s_add_u32 s24, s24, 4096")
    L=[]
    for q in range(4):
        L+= [lambda rt=rt,q=q: dma(rt,q,('a',q)) for rt in range(3)]
        L+= [lambda s=s: wl(s) for s in range(8*q,8*q+8)]
    L+= [lambda q=q: dma(3,q,'a3') for q in range(4)]
    PRE=int(os.environ.get('K3PRE','11'))
    for f in L[:PRE]: f()
    L=L[PRE:]
    def rd(s):
        for rt in range(3):
            b=B+12*(s%2)+4*rt
            A(f"ds_read_b128 v[{b}:{b+3}], v{3 if rt<2 else 4} offset:{(rt%2)*32768+s*1024}")
    for s in range(32):
        q=s//8
        if s%8==0:
            A.stamp()
            A(f"s_waitcnt vmcnt({vm.n(('a',q))})\ns_barrier")
            A.stamp()
            rd(s)
        if s%8!=7: rd(s+1)
        A(f"s_waitcnt vmcnt({vm.n(('w',s))})")
        for rt in range(3):
            b=B+12*(s%2)+4*rt
            A(f"s_waitcnt lgkmcnt({(3 if s%8!=7 else 0)+2-rt})")
            A(f"v_mfma_f32_32x32x16_bf16 v[{ACC+16*rt}:{ACC+16*rt+15}], v[{W+4*s}:{W+4*s+3}], v[{b}:{b+3}], {'0' if s==0 else f'v[{ACC+16*rt}:{ACC+16*rt+15}]'}")
            if rt<(2 if s%2 else 1) and L: L.pop(0)()
    assert not L
    A.stamp()
    A(f"s_waitcnt vmcnt(0)\ns_barrier")
    if int(os.environ.get('PF3','1')):
        A(f"""s_lshr_b32 s27, s2, 3
        s_lshl_b32 s27, s27, 3
        s_add_u32 s27, s27, s3
        s_lshl_b32 s27, s27, 12
        s_bfe_u32 s28, s2, 0x10002
        s_mul_i32 s28, s28, {8*112*1024}
        s_add_u32 s27, s27, s28
        s_add_u32 s27, s27, {hex(W2F)}
        v_lshlrev_b32 v5, 6, v1
        buffer_load_dword v6, v5, s[4:7], s27 offen""")
    E=[]
    for rt in range(3):
        E+=silu_ops(ACC+16*rt,32,40+4*rt)
        E+=[f"buffer_store_dwordx4 v[{40+4*rt}:{43+4*rt}], v3, s[4:7], s25 offen{ST}\ns_add_u32 s25, s25, {112*1024}"]
    NB=6
    rd3=lambda s: A(f"ds_read_b128 v[{B+4*(s%NB)}:{B+4*(s%NB)+3}], v4 offset:{32768+s*1024}")
    for s in range(NB): rd3(s)
    A("s_nop 1")
    a3=ACC+48
    for s in range(32):
        b=B+4*(s%NB)
        A(f"s_waitcnt lgkmcnt({min(NB-1,31-s)})")
        A(f"v_mfma_f32_32x32x16_bf16 v[{a3}:{a3+15}], v[{W+4*s}:{W+4*s+3}], v[{b}:{b+3}], {'0' if s==0 else f'v[{a3}:{a3+15}]'}")
        if s+NB<32: rd3(s+NB)
        n = 5 if s<29 else 0
        for _ in range(n):
            if E: A(E.pop(0))
    while E: A(E.pop(0))
    A.stamp()
    for o in silu_ops(a3,32,52): A(o)
    A(f"buffer_store_dwordx4 v[52:55], v3, s[4:7], s25 offen{ST}")
    A.stamp_end('k3')
    A("k3_end:\ns_endpgm")
    return A.text(), kernel_desc("k3_kernel", 256), "; @launch kernel=k3_kernel grid=(224,1,1) block=(512,1,1) lds=131072"
```

```python
from common import *
from k01 import perm_nlocal8, perm_nlocal16
def k01():
    NC=int(os.environ.get('NC','1')); CS=int(os.environ.get('CS','64'))
    A=Asm()
    A("s_cmp_ge_u32 s2, 256\ns_cbranch_scc1 k1_end")
    A.stamp()
    A.ldptr(4,'ws'); A.ldptr(8,'x'); A.ldptr(12,'wq'); A.ldptr(44,'c'); A.ldptr(52,'wmod'); A.ldptr(36,'dbg')
    A("v_and_b32 v1, 63, v0\nv_lshrrev_b32 v2, 6, v0\ns_nop 0\nv_readfirstlane_b32 s3, v2")
    A("""s_and_b32 s20, s2, 7
    s_lshr_b32 s21, s2, 5
    s_lshl_b32 s21, s21, 3
    s_add_u32 s20, s20, s21
    s_bfe_u32 s21, s2, 0x20003
    v_lshlrev_b32 v3, 4, v1
    v_and_b32 v4, 31, v1
    v_lshlrev_b32 v4, 4, v4
    v_lshrrev_b32 v5, 5, v1
    v_mul_u32_u24 v5, 528, v5
    v_add_u32 v4, v4, v5
    s_waitcnt lgkmcnt(0)""")
    A.srd(4,WSEND)
    A("s_cmp_ge_u32 s3, 4\ns_cbranch_scc1 k1_kv")
    W=128
    A.srd(8,2097152); A.srd(12,524288)
    A(f"""s_lshl_b32 s22, s20, 15
    s_lshl_b32 s23, s3, 13
    s_add_u32 s22, s22, s23
    v_lshlrev_b32 v6, 5, v1""")
    for i in range(8):
        A(f"buffer_load_dwordx4 v[{8+4*i}:{11+4*i}], v3, s[8:11], s22 offen offset:{(i%4)*1024}")
        if i==3: A("s_add_u32 s22, s22, 4096")
    A(f"""s_lshl_b32 s23, s21, 2
    s_add_u32 s23, s23, s3
    s_lshl_b32 s24, s23, 6
    s_lshl_b32 s34, s3, 15
    v_lshrrev_b32 v113, 2, v1
    v_lshlrev_b32 v113, 10, v113
    v_and_b32 v114, 3, v1
    v_lshl_add_u32 v113, v114, 4, v113
    v_lshrrev_b32 v112, 5, v1
    v_lshlrev_b32 v112, 9, v112
    v_bfe_u32 v114, v1, 2, 2
    v_lshl_add_u32 v112, v114, 6, v112
    v_and_b32 v114, 1, v1
    v_lshl_add_u32 v112, v114, 5, v112
    v_and_b32 v114, 16, v1
    v_add_u32 v112, v112, v114
    v_bfe_u32 v114, v1, 1, 1
    v_lshl_add_u32 v112, v114, 3, v112
    v_add_u32 v112, s34, v112
    v_mul_u32_u24 v7, 528, v1
    s_lshl_b32 s25, s3, 7
    v_add_u32 v7, s25, v7
""")
    DE=int(os.environ.get('DE','0'))
    dm=lambda s: A(f"s_add_u32 m0, s34, {1024*s}\ns_nop 0\nbuffer_load_dwordx4 v113, s[12:15], s24 offen lds\ns_add_u32 s24, s24, 16384")
    A('s_barrier')
    for s in range(DE): dm(s)
    A(f"s_waitcnt vmcnt({DE})")
    A.stamp()
    for g in range(2):
        for s in range(DE+(32-DE)//2*g,DE+(32-DE)//2*(g+1)): A(f"s_add_u32 m0, s34, {1024*s}\ns_nop 0\nbuffer_load_dwordx4 v113, s[12:15], s24 offen lds\ns_add_u32 s24, s24, 16384")
        for i in range(4): A.unpack8(40+8*i, 8+16*g+4*i)
        A.ln_rows([(40+8*i, 8+16*g+4*i) for i in range(4)], 72, 26)
    A.stamp()
    for s in range(32):
        if s%8==0: A(f"s_waitcnt vmcnt({24-s})")
        A(f"ds_read_b64_tr_b16 v[{W+4*s}:{W+4*s+1}], v112 offset:{1024*s}\nds_read_b64_tr_b16 v[{W+4*s+2}:{W+4*s+3}], v112 offset:{1024*s+256}")
        if s%4==3: A("s_waitcnt lgkmcnt(4)")
    A("s_waitcnt lgkmcnt(0)")
    A.stamp()
    for i in range(8): A.unpack8(56+8*i,8+4*i)
    A("s_barrier\ns_barrier")
    A.stamp()
    A("""buffer_load_dwordx4 v[48:51], v6, s[4:7], 0 offen offset:2048
    buffer_load_dwordx4 v[52:55], v6, s[4:7], 0 offen offset:2064
    buffer_load_dwordx4 v[40:43], v6, s[4:7], 0 offen
    buffer_load_dwordx4 v[44:47], v6, s[4:7], 0 offen offset:16
    s_waitcnt vmcnt(2)""")
    A.stamp()
    for i in range(8):
        t = 56 + 8*i; p=8+4*i
        for j in range(4): A(f"v_pk_mul_f32 v[{t+2*j}:{t+2*j+1}], v[{t+2*j}:{t+2*j+1}], v[{48+2*j}:{49+2*j}]")
        A.pack8(p,t)
        A.unpack8(t,p)
        if i==0: A("s_waitcnt vmcnt(0)")
        for j in range(4): A(f"v_pk_add_f32 v[{t+2*j}:{t+2*j+1}], v[{t+2*j}:{t+2*j+1}], v[{40+2*j}:{41+2*j}]")
        A.pack8(p,t)
        A(f"ds_write_b128 v7, v[{p}:{p+3}] offset:{16*i}")
    def mm(swap):
        A("s_waitcnt lgkmcnt(0)\ns_barrier")
        NB=8
        rd=lambda s: A(f"ds_read_b128 v[{8+4*(s%NB)}:{11+4*(s%NB)}], v4 offset:{1056*s}")
        for s in range(NB): rd(s)
        for s in range(32):
            A(f"s_waitcnt vmcnt({31-s}) lgkmcnt({min(NB-1,31-s)})")
            a=f"v[{W+4*s}:{W+4*s+3}]"; b=f"v[{8+4*(s%NB)}:{11+4*(s%NB)}]"
            if swap: a,b=b,a
            A(f"v_mfma_f32_32x32x16_bf16 v[64:79], {a}, {b}, {'0' if s==0 else 'v[64:79]'}")
            if s+NB<32: rd(s+NB)
        A("s_nop 15")
    A.stamp()
    mm(False)
    A.stamp()
    A.pack8(8,64); A.pack8(12,72); A.unpack8(64,8); A.unpack8(72,12)
    for i in range(16): A(f"v_mul_f32 v{64+i}, 0x3eb8aa3b, v{64+i}")
    A.pack8(8,64); A.pack8(12,72)
    A(f"""s_lshl_b32 s22, s20, 15
    s_lshl_b32 s23, s23, 11
    s_add_u32 s22, s22, s23
    s_add_u32 s22, s22, {hex(QF)}
    buffer_store_dwordx4 v[8:11], v3, s[4:7], s22 offen sc0 sc1
    buffer_store_dwordx4 v[12:15], v3, s[4:7], s22 offen offset:1024 sc0 sc1""")
    if STAMP==1: A.stamp_end('k1')
    A("s_endpgm")
    def poll(tag,off):
        A(f"""s_mov_b32 s48, 200000
        v_and_b32 v10, {NC-1}, v1
        v_lshlrev_b32 v10, 2, v10
        v_add_u32 v10, 128, v10
        v_mov_b32 v9, 128
        k1_pl{tag}:
        buffer_load_dword v11, v10, s[36:39], 0 offen sc0 sc1
        s_sub_u32 s48, s48, 1
        s_cmp_eq_u32 s48, 0
        s_cbranch_scc1 k1_pd{tag}
        s_waitcnt vmcnt(0)
        v_cmp_ne_u32 vcc, v9, v11
        s_cbranch_vccnz k1_pl{tag}
        k1_pd{tag}:
        s_waitcnt vmcnt(0)""")
    def flag(tag,off,val):
        A(f"""v_mov_b32 v9, 1
        v_mov_b32 v10, 0x20800
        s_mov_b64 exec, 1
        s_waitcnt vmcnt(0)
        ds_add_rtn_u32 v11, v10, v9
        v_mov_b32 v12, {val}
        v_mov_b32 v13, 0
        s_waitcnt lgkmcnt(0)
        v_readfirstlane_b32 s43, v11
        s_cmp_lg_u32 s43, 3
        s_cbranch_scc1 k1_nf{tag}
        buffer_atomic_add v12, v13, s[36:39], 0 offen sc0 sc1
        v_mov_b32 v14, 128
        s_waitcnt vmcnt(0)
        v_readfirstlane_b32 s43, v12
        s_cmp_lg_u32 s43, {128//NC+112}
        s_cbranch_scc1 k1_nf{tag}
        buffer_store_dword v14, v13, s[36:39], 0 offen offset:128 sc0 sc1
        k1_nf{tag}:
        s_mov_b64 exec, -1""")
    A("k1_kv:")
    A.srd(36,256)
    A("v_mov_b32 v9, 0\nv_mov_b32 v10, 0x20800\nds_write_b32 v10, v9")
    A("""s_and_b32 s41, s2, 15
    s_lshr_b32 s40, s2, 5
    s_lshl_b32 s40, s40, 4
    s_add_u32 s41, s41, s40
    s_lshl_b32 s40, s41, 2
    s_add_u32 s40, s40, s3
    s_sub_u32 s40, s40, 4
    s_cmp_lt_u32 s21, 2
    s_cbranch_scc1 k1_wo
    s_cmp_lt_u32 s41, 96
    s_cbranch_scc1 k1_mod
    s_cmp_lt_u32 s41, 104
    s_cbranch_scc1 k1_wkv
    s_cmp_lg_u32 s3, 4
    s_cbranch_scc1 k1_end
    s_barrier
    s_cmp_lg_u32 s41, 104
    s_cbranch_scc1 k1_b1""")
    A("v_lshlrev_b32 v5, 7, v1\nv_mov_b32 v8, 0")
    for i in range(9): A(f"s_mov_b32 s24, {0x8000+8192*i}\nbuffer_store_dword v8, v5, s[4:7], s24 offen sc0 sc1")
    A("k1_b1:\ns_barrier\nk1_b2:")
    poll('a',0)
    A("s_barrier\ns_endpgm\nk1_wkv:")
    A.ldptr(8,'wk'); A.ldptr(12,'wv')
    A("s_sub_u32 s40, s40, 384")
    A("v_and_b32 v12, 15, v1")
    perm_nlocal8(A,13,12,14)
    A("""v_lshrrev_b32 v14, 5, v1
    v_lshlrev_b32 v14, 8, v14
    v_lshl_add_u32 v13, v13, 1, v14
    v_lshl_add_u32 v15, v12, 1, v14
    v_add_u32 v14, 128, v13
    v_add_u32 v12, 128, v15
    s_lshl_b32 s22, s40, 9
    v_lshlrev_b32 v3, 4, v1
    s_waitcnt lgkmcnt(0)""")
    A.srd(8,16384); A.srd(12,16384)
    A.frag_gather(0,16,13,14,8,'s22',32)
    A.frag_gather(0,24,15,12,12,'s22',32)
    A(f"s_lshl_b32 s24, s40, 10\ns_add_u32 s24, s24, {hex(WKVF)}")
    A("s_barrier\nv_and_b32 v2, 16, v1\nv_cmp_eq_u32 vcc, 0, v2\ns_nop 1\ns_waitcnt vmcnt(0)")
    for j in range(8): A(f"v_cndmask_b32 v{16+j}, v{24+j}, v{16+j}, vcc")
    A.frag_combine(12,16)
    A("buffer_store_dwordx4 v[12:15], v3, s[4:7], s24 offen sc0 sc1")
    flag('w',128,16)
    A("s_cmp_eq_u32 s3, 4\ns_cbranch_scc1 k1_b1\ns_endpgm\nk1_mod:")
    A("""s_setprio 3
    v_bfe_u32 v2, v0, 2, 6
    v_and_b32 v3, 3, v0
    v_mul_u32_u24 v4, 6144, v2
    v_lshl_add_u32 v4, v3, 4, v4
    v_lshlrev_b32 v5, 1, v2
    s_lshl_b32 s42, s41, 6""")
    A.srd(44,1024); A.srd(52,3145728)
    for i in range(8): A(f"buffer_load_ushort v{8+i}, v5, s[44:47], 0 offen offset:{128*i}")
    for i in range(8):
        A(f"buffer_load_dwordx4 v[{16+4*i}:{19+4*i}], v4, s[52:55], s42 offen\ns_add_u32 s42, s42, {64*6144}")
    A.ns=1; A.stamp()
    A("s_waitcnt lgkmcnt(0)\ns_barrier\ns_waitcnt vmcnt(8)")
    A.stamp()
    T=56
    for i in range(8): A(f"v_lshlrev_b32 v{8+i}, 16, v{8+i}\nv_mul_f32 v{T+i}, 0xbfb8aa3b, v{8+i}")
    for i in range(8): A(f"v_exp_f32 v{T+i}, v{T+i}")
    for i in range(8): A(f"v_add_f32 v{T+i}, 1.0, v{T+i}")
    for i in range(8): A(f"v_rcp_f32 v{T+i}, v{T+i}")
    for i in range(8): A(f"v_mul_f32 v{8+i}, v{8+i}, v{T+i}")
    for i in range(8): A(f"v_cvt_pk_bf16_f32 v{8+i}, v{8+i}, v{8+i}\nv_and_b32 v{8+i}, 0xffff0000, v{8+i}")
    for i in range(8):
        A(f"s_waitcnt vmcnt({7-i})")
        A.unpack8(T,16+4*i)
        for j in range(8): A(f"{'v_fmac_f32' if i else 'v_mul_f32'} v{48+j}, v{8+i}, v{T+j}")
    A.stamp()
    for st in ["row_ror:4","row_ror:8"]:
        for j in range(8): A(f"v_add_f32_dpp v{48+j}, v{48+j}, v{48+j} {st} row_mask:0xf bank_mask:0xf")
    A("""v_bfe_u32 v2, v0, 4, 4
    v_lshlrev_b32 v2, 7, v2
    v_lshl_add_u32 v2, v3, 5, v2
    v_add_u32 v2, 0x20000, v2
    ds_write_b128 v2, v[48:51]
    ds_write_b128 v2, v[52:55] offset:16
    v_mov_b32 v9, 1
    v_mov_b32 v10, 0x20800
    v_and_b32 v2, 31, v0
    v_lshlrev_b32 v2, 2, v2
    v_add_u32 v6, 0x20000, v2
    s_waitcnt lgkmcnt(0)
    s_mov_b64 exec, 1
    ds_add_rtn_u32 v11, v10, v9
    s_waitcnt lgkmcnt(0)
    v_readfirstlane_b32 s43, v11
    s_mov_b64 exec, -1
    s_cmp_lg_u32 s43, 3
    s_cbranch_scc1 k1_jd""")
    for i in range(16): A(f"ds_read_b32 v{8+i}, v6 offset:{128*i}")
    A("s_waitcnt lgkmcnt(0)")
    for st in (8,4,2,1):
        for i in range(st): A(f"v_add_f32 v{8+i}, v{8+i}, v{8+i+st}")
    A(f"""v_cvt_pk_bf16_f32 v8, v8, v8
    v_and_b32 v8, 0xffff0000, v8
    s_lshr_b32 s43, s41, 4
    s_cmp_eq_u32 s43, 1
    s_cselect_b32 s42, 1.0, 0
    s_cmp_eq_u32 s43, 4
    s_cselect_b32 s42, 1.0, s42
    v_add_f32 v8, s42, v8
    v_cvt_pk_bf16_f32 v8, v8, v8
    v_and_b32 v8, 0xffff0000, v8
    s_lshl_b32 s42, s41, 7
    buffer_store_dword v8, v2, s[4:7], s42 offen sc0 sc1
    s_cmp_ge_u32 s41, 32
    s_cbranch_scc1 k1_jd
    v_mov_b32 v12, 4
    v_mov_b32 v13, 0
    s_and_b32 s49, s41, {NC-1}
    s_mov_b32 s50, {128//NC+124}
    s_cselect_b32 s50, {128//NC-4}, s50
    s_lshl_b32 s51, s49, 2
    s_mul_i32 s49, s49, {CS}
    s_waitcnt vmcnt(0)
    s_mov_b64 exec, 1
    buffer_atomic_add v12, v13, s[36:39], s49 offen sc0 sc1
        v_mov_b32 v14, 128
        s_waitcnt vmcnt(0)
        v_readfirstlane_b32 s43, v12
        s_cmp_lg_u32 s43, s50
        s_cbranch_scc1 k1_nm
        buffer_store_dword v14, v13, s[36:39], s51 offen offset:128 sc0 sc1
k1_nm:
    s_mov_b64 exec, -1""")
    A("k1_jd:")
    if STAMP==2: A.stamp_end('m',wgs=(16,63),wave=7)
    A("s_cmp_eq_u32 s3, 4\ns_cbranch_scc1 k1_b1\ns_endpgm\nk1_wo:")
    A.ldptr(16,'wo')
    A("s_waitcnt lgkmcnt(0)")
    A.srd(16,524288)
    A("""    v_and_b32 v12, 15, v1
    v_lshrrev_b32 v13, 2, v12
    v_lshlrev_b32 v13, 4, v13
    v_and_b32 v14, 3, v12
    v_add_u32 v13, v13, v14
    v_lshrrev_b32 v14, 4, v1
    v_lshlrev_b32 v14, 14, v14
    v_lshl_add_u32 v13, v13, 1, v14
    v_add_u32 v14, 8192, v13
    s_and_b32 s22, s40, 7
    s_lshl_b32 s22, s22, 16
    s_bfe_u32 s23, s40, 0x10003
    s_lshl_b32 s23, s23, 12
    s_add_u32 s22, s22, s23
    s_lshr_b32 s23, s40, 6
    s_lshl_b32 s23, s23, 7
    s_add_u32 s22, s22, s23
    s_bfe_u32 s23, s40, 0x20004
    s_lshl_b32 s23, s23, 3
    s_add_u32 s22, s22, s23""")
    A.frag_gather(0,16,13,14,16,'s22',1024)
    A(f"s_lshl_b32 s24, s40, 10\ns_add_u32 s24, s24, {hex(WOF)}")
    A("s_barrier\ns_waitcnt vmcnt(0)")
    A.frag_combine(12,16)
    A("buffer_store_dwordx4 v[12:15], v3, s[4:7], s24 offen sc0 sc1\ns_cmp_lg_u32 s3, 4\ns_cbranch_scc1 k1_end")
    A('s_barrier'); poll('b',32); A('s_barrier')
    A(f"s_mov_b32 s24, {hex(WKVF)}")
    for s in range(32):
        A(f"buffer_load_dwordx4 v[{W+4*s}:{W+4*s+3}], v3, s[4:7], s24 offen offset:{(s%4)*1024}")
        if s%4==3 and s<31: A("s_add_u32 s24, s24, 4096")
    A(f"s_mul_i32 s22, s20, {TS}\ns_add_u32 s22, s22, {hex(KV)}\ns_cmp_eq_u32 s21, 1\ns_cbranch_scc1 k1_v")
    mm(False)
    A.pack8(8,64)
    A("buffer_store_dwordx4 v[8:11], v3, s[4:7], s22 offen sc0 sc1\ns_endpgm")
    A("k1_v:")
    mm(True)
    A.pack8(8,64); A.pack8(12,72)
    A("""v_and_b32 v5, 15, v1
    v_and_b32 v6, 16, v1
    v_cmp_ne_u32 vcc, 0, v6
    v_lshrrev_b32 v6, 5, v1
    v_add_u32 v7, -1, v6
    v_and_b32 v7, 0x3f803f80, v7
    v_mul_u32_u24 v6, 272, v6
    v_cndmask_b32 v5, 16, v5, vcc
    v_lshl_add_u32 v5, v5, 4, v6""")
    for i in range(8): A(f"v_cndmask_b32 v{8+i}, v7, v{8+i}, vcc")
    A("""buffer_store_dwordx4 v[8:11], v5, s[4:7], s22 offen offset:1024 sc0 sc1
    buffer_store_dwordx4 v[12:15], v5, s[4:7], s22 offen offset:1568 sc0 sc1""")
    A("k1_end:\ns_endpgm")
    return A.text(), kernel_desc("k1_kernel", 256), "; @launch kernel=k1_kernel grid=(256,1,1) block=(512,1,1) lds=133184"
```

```python
from common import *
class VM:
    def __init__(s): s.q=[]
    def add(s,tag,n=1): s.q+= [tag]*n
    def n(s,tag):
        last=max(i for i,t in enumerate(s.q) if t==tag)
        return len(s.q)-1-last
ST=os.environ.get('ST3',' sc0 sc1')
def silu_ops(g,t,p):
    ops=[]
    for j in range(8): ops.append(f"v_mul_f32 v{t+j}, 0xbfb8aa3b, v{g+j}")
    for j in range(8): ops.append(f"v_exp_f32 v{t+j}, v{t+j}")
    for j in range(8): ops.append(f"v_add_f32 v{t+j}, 1.0, v{t+j}")
    for j in range(8): ops.append(f"v_rcp_f32 v{t+j}, v{t+j}")
    for j in range(8): ops.append(f"v_mul_f32 v{g+j}, v{g+j}, v{g+8+j}")
    for j in range(8): ops.append(f"v_mul_f32 v{t+j}, v{t+j}, v{g+j}")
    for i in range(4): ops.append(f"v_cvt_pk_bf16_f32 v{p+i}, v{t+2*i}, v{t+2*i+1}")
    return ops
def k3f():
    A=Asm(); vm=VM()
    W=128; ACC=64; B=8
    A("s_cmp_ge_u32 s2, 256\ns_cbranch_scc1 k3_end")
    A.stamp()
    A.ldptr(4,'ws'); A.ldptr(8,'out')
    A("v_and_b32 v1, 63, v0\nv_lshrrev_b32 v2, 6, v0\ns_nop 0\nv_readfirstlane_b32 s3, v2")
    A(f"""s_and_b32 s20, s2, 3
    s_lshl_b32 s20, s20, 2
    s_bfe_u32 s21, s2, 0x20003
    s_add_u32 s20, s20, s21
    s_bfe_u32 s21, s2, 0x10002
    s_mul_i32 s21, s21, 7
    s_lshr_b32 s22, s2, 5
    s_add_u32 s21, s21, s22
    s_lshl_b32 s21, s21, 3
    s_add_u32 s21, s21, s3
    v_lshlrev_b32 v3, 4, v1
    v_add_u32 v4, 0x10000, v3
    s_lshl_b32 s22, s3, 10
    s_lshl_b32 s23, s20, 17
    s_add_u32 s23, s23, s22
    s_add_u32 s23, s23, {hex(H2F)}
    s_lshl_b32 s24, s21, 15
    s_add_u32 s24, s24, {hex(W13F)}
    s_lshl_b32 s25, s20, 2
    s_mul_i32 s25, s25, {112*1024}
    s_lshl_b32 s26, s21, 10
    s_add_u32 s25, s25, s26
    s_add_u32 s25, s25, {hex(HMF)}
    s_waitcnt lgkmcnt(0)""")
    A.srd(4,WSEND); A.srd(8,2097152)
    PFY=int(os.environ.get('PFY','14')); PFS=int(os.environ.get('PFS','28')); PFY0=int(os.environ.get('PFY0','0'))
    M2 = '''s_bfe_u32 s41, s2, 0x30003
    s_add_u32 s40, s40, s41
    s_bfe_u32 s41, s2, 0x10002
    s_lshl_b32 s41, s41, 2
    s_lshr_b32 s42, s2, 6
    s_add_u32 s41, s41, s42
''' if os.environ.get('MAP','1')=='0' else 's_bfe_u32 s41, s2, 0x20003\ns_add_u32 s40, s40, s41\ns_and_b32 s41, s2, 4\ns_add_u32 s40, s40, s41\ns_lshr_b32 s41, s2, 5'
    A(f"""s_and_b32 s40, s2, 3
    s_lshl_b32 s40, s40, 3
    {M2}
    v_add_u32 v7, {112*1024}, v3
    s_mul_i32 s42, s3, {7*1024}
    s_bfe_u32 s50, s2, 0x10002
    s_mul_i32 s50, s50, {56*1024}
    s_add_u32 s42, s42, s50
    s_lshl_b32 s50, s50, 1
    s_sub_u32 s50, {56*1024}, s50
    s_mul_i32 s32, s40, {2*112*1024}
    s_add_u32 s32, s32, s42
    s_add_u32 s32, s32, {hex(HMF)}
    s_mul_i32 s36, s41, {2*112*1024}
    s_add_u32 s36, s36, s42
    s_add_u32 s36, s36, {hex(W2F)}
    s_add_u32 s33, s32, 4096
    s_add_u32 s34, s32, s50
    s_add_u32 s35, s34, 4096
    s_add_u32 s37, s36, 4096
    s_add_u32 s38, s36, s50
    s_add_u32 s39, s38, 4096
    s_lshr_b32 s50, s2, 7
    s_mul_i32 s50, s50, {112*1024}
    s_bfe_u32 s51, s2, 0x10006
    s_mul_i32 s51, s51, 3584
    s_add_u32 s50, s50, s51
    s_add_u32 s50, s50, s34
    s_lshr_b32 s43, s40, 1
    s_lshl_b32 s43, s43, 11
    s_add_u32 s43, s43, 0x8000
    s_lshl_b32 s44, s20, 11
    s_add_u32 s44, s44, 0x8000
    v_and_b32 v5, 31, v1
    v_lshlrev_b32 v5, 10, v5
    v_lshrrev_b32 v6, 5, v1
    v_lshl_add_u32 v5, v6, 5, v5
    v_lshlrev_b32 v6, 6, v6
    s_lshl_b32 s45, s40, 1
    s_bfe_u32 s46, s3, 0x10001
    s_add_u32 s45, s45, s46
    s_lshl_b32 s45, s45, 15
    s_lshl_b32 s46, s41, 1
    s_lshr_b32 s47, s3, 2
    s_add_u32 s46, s46, s47
    s_lshl_b32 s46, s46, 2
    s_and_b32 s47, s3, 1
    s_add_u32 s46, s46, s47
    s_lshl_b32 s47, s46, 4
    s_add_u32 s45, s45, s47
    s_lshl_b32 s46, s46, 5
    s_add_u32 s46, s46, {5*2048}
    s_add_u32 s47, s45, {hex(X1)}
    s_cmp_ge_u32 s2, 224
    s_cbranch_scc1 k3_np""")
    def w2l(j):
        s_,nt=j//2,j%2
        return f"buffer_load_dwordx4 v[{W+4*j}:{W+4*j+3}], v{7 if nt else 3}, s[4:7], s{36+2*(s_//7)+(s_%7)//4} offen offset:{((s_%7)%4)*1024}"
    def dma(rt,q,tag):
        off=rt*32768+q*8192
        A(f"s_add_u32 m0, s22, {off}\ns_add_u32 s26, s23, {off}\nbuffer_load_dwordx4 v3, s[4:7], s26 offen lds"); vm.add(tag)
    def wl(s):
        A(f"buffer_load_dwordx4 v[{W+4*s}:{W+4*s+3}], v3, s[4:7], s24 offen offset:{(s%4)*1024}"); vm.add(('w',s))
        if s%4==3: A("s_add_u32 s24, s24, 4096")
    L=[]
    for q in range(4):
        L+= [lambda rt=rt,q=q: dma(rt,q,('a',q)) for rt in range(3)]
        L+= [lambda s=s: wl(s) for s in range(8*q,8*q+8)]
    L+= [lambda q=q: dma(3,q,'a3') for q in range(4)]
    PRE=int(os.environ.get('K3PRE','11'))
    for f in L[:PRE]: f()
    if int(os.environ.get('TLB','0')):
        A("v_mul_u32_u24 v60, 114688, v1\ns_mov_b64 exec, 15\nbuffer_load_dword v61, v60, s[4:7], s25 offen sc0 sc1\ns_mov_b64 exec, -1"); vm.add('tlb')
    L=L[PRE:]
    def rd(s):
        for rt in range(3):
            b=B+12*(s%2)+4*rt
            A(f"ds_read_b128 v[{b}:{b+3}], v{3 if rt<2 else 4} offset:{(rt%2)*32768+s*1024}")
    for s in range(32):
        q=s//8
        if s%8==0:
            A(f"s_waitcnt vmcnt({vm.n(('a',q))})\ns_barrier")
            if s==0: A.stamp()
            rd(s)
        if s%8!=7: rd(s+1)
        A(f"s_waitcnt vmcnt({vm.n(('w',s))})")
        for rt in range(3):
            b=B+12*(s%2)+4*rt
            A(f"s_waitcnt lgkmcnt({(3 if s%8!=7 else 0)+2-rt})")
            A(f"v_mfma_f32_32x32x16_bf16 v[{ACC+16*rt}:{ACC+16*rt+15}], v[{W+4*s}:{W+4*s+3}], v[{b}:{b+3}], {'0' if s==0 else f'v[{ACC+16*rt}:{ACC+16*rt+15}]'}")
            if rt<(2 if s%2 else 1) and L: L.pop(0)()
    assert not L
    A.stamp()
    A(f"s_waitcnt vmcnt(0)\ns_barrier")
    E=[]
    for rt in range(3):
        E+=silu_ops(ACC+16*rt,32,40+4*rt)
        E+=[f"buffer_store_dwordx4 v[{40+4*rt}:{43+4*rt}], v3, s[4:7], s25 offen{ST}\ns_add_u32 s25, s25, {112*1024}"]
    NB=6; YS=int(os.environ.get('YS','2')); assert PFY0+(PFY-1)*YS<32
    rd3=lambda s: A(f"ds_read_b128 v[{B+4*(s%NB)}:{B+4*(s%NB)+3}], v4 offset:{32768+s*1024}")
    for s in range(NB): rd3(s)
    A("s_nop 1")
    a3=ACC+48
    for s in range(32):
        b=B+4*(s%NB)
        A(f"s_waitcnt lgkmcnt({min(NB-1,31-s)})")
        A(f"v_mfma_f32_32x32x16_bf16 v[{a3}:{a3+15}], v[{W+4*s}:{W+4*s+3}], v[{b}:{b+3}], {'0' if s==0 else f'v[{a3}:{a3+15}]'}")
        if s+NB<32: rd3(s+NB)
        if s>=PFY0 and (s-PFY0)%YS==0 and (s-PFY0)//YS<PFY: A(w2l((s-PFY0)//YS))
        n = 5 if s<29 else 0
        for _ in range(n):
            if E: A(E.pop(0))
    while E: A(E.pop(0))
    A.stamp()
    for o in silu_ops(a3,32,52): A(o)
    A(f"buffer_store_dwordx4 v[52:55], v3, s[4:7], s25 offen{ST}")
    A.stamp()
    A("s_waitcnt vmcnt(0)\ns_barrier")
    A.stamp()
    FLAG=int(os.environ.get('FLAG','1')); PALL=int(os.environ.get('PALL','0'))
    A(f"""s_cmp_lg_u32 s3, 0
    s_cbranch_scc1 k3_sy
    s_mov_b64 exec, 1
    s_lshl_b32 s48, s21, 4
    v_mov_b32 v8, {'s48' if FLAG else '0'}
    v_mov_b32 v9, 1
    {'buffer_store_dword v9, v8, s[4:7], s44 offen sc0 sc1' if FLAG else 'buffer_atomic_add v9, v8, s[4:7], s44 offen sc1'}
    s_mov_b64 exec, -1
    s_branch k3_sy
    k3_np:""")
    NPF=int(os.environ.get('NPF','1'))
    if NPF:
        A(f"""s_bfe_u32 s48, s2, 0x20003
        s_lshl_b32 s48, s48, 3
        s_add_u32 s48, s48, s3
        s_mul_i32 s48, s48, {56*1024}
        s_add_u32 s48, s48, {hex(W2F)}
        v_lshlrev_b32 v4, 7, v1""")
        for r in range(7):
            A("buffer_load_dword v252, v4, s[4:7], s48 offen\ns_add_u32 s48, s48, 8192")
            if (r+1)%NPF==0: A("s_waitcnt vmcnt(0)")
    for j in range(PFY): A(w2l(j))
    A("k3_sy:\nv_min_u32 v4, 27, v1\nv_lshlrev_b32 v4, 7, v4")
    vm=VM()
    A("""buffer_load_dwordx4 v[52:55], v5, s[4:7], s47 offen
    buffer_load_dwordx4 v[56:59], v6, s[4:7], s46 offen
    buffer_load_dwordx4 v[60:63], v6, s[4:7], s46 offen offset:16""")
    PW=int(os.environ.get('PW','0'))
    chk = "v_cmp_eq_u32 vcc, 0, v11\ns_cbranch_vccnz k3_pl" if FLAG else "v_readfirstlane_b32 s49, v11\ns_cmp_lt_u32 s49, 14\ns_cbranch_scc1 k3_pl"
    poll=f"""s_mov_b32 s48, 200000
    {'v_min_u32 v10, 13, v1' if FLAG else 'v_mov_b32 v10, 0'}
    v_lshlrev_b32 v10, 7, v10
    k3_pl:
    buffer_load_dword v11, v10, s[4:7], s43 offen sc0 sc1
    s_sub_u32 s48, s48, 1
    s_cmp_eq_u32 s48, 0
    s_cbranch_scc1 k3_pd
    s_waitcnt vmcnt(0)
    {chk}
    k3_pd:
    s_waitcnt vmcnt(0)"""
    if PALL:
        for j in range(PFY,PFS): A(w2l(j))
        A(poll)
    else:
        A(f"s_cmp_eq_u32 s3, {PW}\ns_cbranch_scc1 k3_poll")
        for j in range(PFY,PFS): A(w2l(j))
        A("s_barrier\ns_branch k3_go\nk3_poll:")
        A(poll); A("s_barrier")
        for j in range(PFY,PFS): A(w2l(j))
    A("k3_go:")
    A.stamp()
    slots=[8+4*i for i in range(11)]+[240,244,248]
    def hl(s_):
        for j in (2*s_,2*s_+1):
            if j>=PFS: A(w2l(j)); vm.add(('h',s_))
        for rt in range(2):
            r=slots[(2*s_+rt)%14]
            A(f"buffer_load_dwordx4 v[{r}:{r+3}], v{7 if rt else 3}, s[4:7], s{32+2*(s_//7)+(s_%7)//4} offen offset:{((s_%7)%4)*1024}"); vm.add(('h',s_))
    CP=int(os.environ.get('CP','9'))
    for s_ in range(7):
        if s_==CP: A("buffer_load_dword v252, v4, s[4:7], s50 offen"); vm.add('cp')
        hl(s_)
    for s_ in range(14):
        A(f"s_waitcnt vmcnt({vm.n(('h',s_))})")
        if s_ in (0,7): A.stamp()
        for ti in range(4):
            a=W+4*(2*s_+(ti>>1)); b=slots[(2*s_+(ti&1))%14]; c=ACC+16*ti
            A(f"v_mfma_f32_32x32x16_bf16 v[{c}:{c+15}], v[{a}:{a+3}], v[{b}:{b+3}], {'0' if s_==0 else f'v[{c}:{c+15}]'}")
        if s_+7<14: hl(s_+7)
    A.stamp()
    A("s_lshl_b32 s22, s3, 10\nv_add_u32 v8, s22, v3\nv_add_u32 v9, 0x10000, v8\ns_lshl_b32 s22, s3, 14\nv_add_u32 v2, s22, v3")
    A.unpack8(128,52)
    A("s_nop 4")
    for ti in range(4):
        if ti==3: A("s_nop 7")
        for i in range(4): A(f"ds_write_b128 v{8+(ti>>1)}, v[{ACC+16*ti+4*i}:{ACC+16*ti+4*i+3}] offset:{32768*(ti&1)+8192*i}")
    A("s_waitcnt lgkmcnt(0)\ns_barrier")
    for i in range(2):
        for w in range(8): A(f"ds_read_b128 v[{ACC+32*i+4*w}:{ACC+32*i+4*w+3}], v2 offset:{8192*i+1024*w}")
    for i in range(2):
        b=ACC+32*i
        A(f"s_waitcnt lgkmcnt({12-8*i})")
        for j in range(4): A(f"v_add_f32 v{b+j}, v{b+j}, v{b+4+j}\nv_add_f32 v{b+8+j}, v{b+8+j}, v{b+12+j}")
        A(f"s_waitcnt lgkmcnt({8-8*i})")
        for j in range(4): A(f"v_add_f32 v{b+16+j}, v{b+16+j}, v{b+20+j}\nv_add_f32 v{b+24+j}, v{b+24+j}, v{b+28+j}")
        for j in range(4): A(f"v_add_f32 v{b+j}, v{b+j}, v{b+8+j}\nv_add_f32 v{b+16+j}, v{b+16+j}, v{b+24+j}")
        for j in range(4): A(f"v_add_f32 v{b+j}, v{b+j}, v{b+16+j}")
        for j in range(4): A(f"v_fmac_f32 v{128+4*i+j}, v{b+j}, v{56+4*i+j}")
    A.pack8(136,128)
    A("buffer_store_dwordx4 v[136:139], v5, s[8:11], s45 offen")
    A.stamp_end('k3',wave=int(os.environ.get('SW3','0')))
    A("k3_end:\ns_endpgm")
    return A.text(), kernel_desc("k3_kernel", 256), "; @launch kernel=k3_kernel grid=(256,1,1) block=(512,1,1) lds=131072"
```

```python
from common import *
PF=int(os.environ.get('PF','0'))
ST2=os.environ.get('ST2',' sc0 sc1')
PRIO=int(os.environ.get('PRIO','1'))
BAR=int(os.environ.get('BAR','1'))
import k3f
FZ=int(os.environ.get('FUSE23','1')); NW1=int(os.environ.get('NW1','8'))
def k2():
    A=Asm(); vm=VM()
    Q=4; NM=8; S=[24,40]; O=56; P0=72; P1=76; K=80; V0=84; V1=88; VA=92; DUM=93; T=94
    KAD=95; WO=96; NREG=10; NLDS=3
    STG=106496; LX=141312; LM=LX+8192; LDS_O=LM+6144; LDS_Y=98304; LDS_H=115712
    mf32="v_mfma_f32_32x32x16_bf16"
    r=lambda a,n=4: f"v[{a}:{a+n-1}]"
    A("s_cmp_ge_u32 s2, 256\ns_cbranch_scc1 k2_end")
    A.stamp()
    A.ldptr(4,'ws'); A.ldptr(8,'x'); A.ldptr(16,'w1'); A.ldptr(18,'w3'); A.ldptr(20,'w2')
    A("v_and_b32 v1, 63, v0\nv_lshrrev_b32 v2, 6, v0\ns_nop 0\nv_readfirstlane_b32 s3, v2")
    A(f"""s_lshl_b32 s24, s2, 3
    s_add_u32 s24, s24, s3
    v_lshlrev_b32 v3, 4, v1
    v_and_b32 v2, 31, v1
    v_lshrrev_b32 v{T}, 1, v2
    v_lshlrev_b32 v{T}, 11, v{T}
    v_and_b32 v{VA}, 1, v2
    v_lshl_add_u32 v{T}, v{VA}, 9, v{T}
    v_lshrrev_b32 v{VA}, 5, v1
    v_lshl_add_u32 v{T}, v{VA}, 10, v{T}
    s_lshr_b32 s25, s24, 5
    s_lshl_b32 s25, s25, 15
    s_and_b32 s26, s24, 31
    s_lshl_b32 s26, s26, 4
    s_add_u32 s25, s25, s26
    s_add_u32 s26, s25, {hex(QF)}
    s_lshl_b32 s27, s3, 10
    s_add_u32 s28, s27, {hex(KV)}
    s_mov_b32 m0, s27
    s_waitcnt lgkmcnt(0)""")
    A.srd(4,WSEND); A.srd(8,2097152)
    def kv(it):
        if it: A(f"s_add_u32 m0, s27, {8192*it}\ns_add_u32 s28, s28, 8192")
        A("buffer_load_dwordx4 v3, s[4:7], s28 offen lds"); vm.add(('kv',it))
    kv(0); kv(1)
    A(f"buffer_load_dwordx4 {r(Q)}, v{T}, s[4:7], s26 offen"); vm.add('q')
    A(f"""v_cmp_lt_u32 vcc, 16, v2
    v_cmp_eq_u32 s[30:31], 16, v2
    v_min_u32 v2, 16, v2
    v_cndmask_b32 v{VA}, v{VA}, 1, vcc
    v_cndmask_b32 v{VA}, v{VA}, 0, s[30:31]
    v_mul_u32_u24 v{VA}, 272, v{VA}
    v_lshl_add_u32 v{VA}, v2, 4, v{VA}
    v_add_u32 v{VA}, 1024, v{VA}
    v_mov_b32 v{KAD}, v3
    s_lshl_b32 s38, s3, 16
    s_add_u32 s38, s38, {hex(WOF)}
    s_lshl_b32 s40, s3, 12""")
    for i in range(4): A(f"v_mov_b32 v{P1+i}, 0")
    SH=240; SA=236
    A(f"""s_lshr_b32 s45, s3, 2
    s_lshl_b32 s46, s45, 8
    s_add_u32 s46, s46, s2
    s_and_b32 s47, s3, 3
    s_mul_i32 s48, s45, {17408}
    s_add_u32 s48, s48, {STG}
    v_lshrrev_b32 v{SH}, 5, v1
    v_bfe_u32 v{SH+1}, v1, 4, 1
    v_bfe_u32 v{SH+2}, v1, 2, 2
    v_and_b32 v{SH+3}, 3, v1
    s_mov_b32 s14, 1835008
    s_mov_b32 s15, 0x00020000
    s_cmp_ge_u32 s46, 224
    s_cbranch_scc1 k2_shw2
    s_cmp_lt_u32 s47, 2
    s_cselect_b32 s12, s16, s18
    s_cselect_b32 s13, s17, s19
    s_and_b32 s50, s46, 31
    s_lshr_b32 s51, s46, 5
    s_mul_i32 s52, s50, {16*3584}
    s_and_b32 s53, s47, 1
    s_mul_i32 s53, s53, {8*3584}
    s_add_u32 s52, s52, s53
    s_lshl_b32 s53, s51, 9
    s_add_u32 s52, s52, s53
    s_movk_i32 s53, 7168
    v_and_b32 v{SA+2}, 31, v1
    v_lshlrev_b32 v{SA+2}, 4, v{SA+2}
    v_mul_u32_u24 v{SA}, 3584, v{SH}
    v_add_u32 v{SA+2}, v{SA+2}, v{SA}
    v_lshrrev_b32 v{SA}, 1, v{SH+2}
    v_lshl_add_u32 v{SA}, v{SH}, 2, v{SA}
    v_lshl_add_u32 v{SA}, v{SH+1}, 3, v{SA}
    v_mul_u32_u24 v{SA}, 1088, v{SA}
    v_and_b32 v{SA+1}, 1, v{SH+2}
    v_lshl_add_u32 v{SA}, v{SA+1}, 9, v{SA}
    v_and_b32 v{SA+1}, 1, v{SH+3}
    v_lshl_add_u32 v{SA}, v{SA+1}, 4, v{SA}
    v_lshrrev_b32 v{SA+1}, 1, v{SH+3}
    v_lshl_add_u32 v{SA}, v{SA+1}, 3, v{SA}
    s_lshr_b32 s54, s47, 1
    s_lshl_b32 s54, s54, 3
    s_and_b32 s55, s47, 1
    s_add_u32 s54, s54, s55
    s_lshl_b32 s55, s54, 5
    s_add_u32 s55, s55, s48
    v_add_u32 v{SA}, s55, v{SA}
    v_add_u32 v{SA+1}, {2*1088}, v{SA}
    s_lshl_b32 s55, s51, 4
    s_add_u32 s54, s54, s55
    s_lshl_b32 s54, s54, 5
    s_add_u32 s54, s54, s50
    s_lshl_b32 s54, s54, 10
    s_add_u32 s54, s54, {hex(W13F)}
    s_mov_b32 s55, {64*1024}
    s_branch k2_shdone
    k2_shw2:
    s_mov_b32 s12, s20
    s_mov_b32 s13, s21
    s_sub_u32 s50, s46, 224
    s_lshl_b32 s52, s50, 14
    s_lshl_b32 s53, s47, 12
    s_add_u32 s52, s52, s53
    s_movk_i32 s53, 1024
    v_mov_b32 v{SA+2}, v3
    v_lshl_add_u32 v{SA}, v{SH}, 3, v{SH+2}
    v_mul_u32_u24 v{SA}, 1088, v{SA}
    v_and_b32 v{SA+1}, 1, v{SH+3}
    v_lshl_add_u32 v{SA}, v{SA+1}, 5, v{SA}
    v_lshrrev_b32 v{SA+1}, 1, v{SH+3}
    v_lshl_add_u32 v{SA+1}, v{SH+1}, 1, v{SA+1}
    v_lshl_add_u32 v{SA}, v{SA+1}, 3, v{SA}
    s_lshl_b32 s55, s47, 8
    s_add_u32 s55, s55, s48
    v_add_u32 v{SA}, s55, v{SA}
    v_add_u32 v{SA+1}, {4*1088}, v{SA}
    s_mul_i32 s54, s47, {4*112*1024}
    s_lshl_b32 s55, s50, 10
    s_add_u32 s54, s54, s55
    s_add_u32 s54, s54, {hex(W2F)}
    s_mov_b32 s55, {112*1024}
    s_cmp_lt_u32 s46, 336
    s_cbranch_scc1 k2_shdone
    s_mov_b32 s54, 0x40000000
    k2_shdone:
    s_mul_i32 s49, s47, {4*1088}
    s_add_u32 s48, s48, s49""")
    A.stamp()
    A(f"s_waitcnt vmcnt({vm.n('q')})\ns_barrier")
    for j in range(2,6): kv(j)
    A.stamp()
    bufs=[S[0],S[1],O,NM]
    for t in range(4): A(f"ds_read_b128 {r(WO+4*t)}, v3 offset:{TS*t}")
    for t in range(4): A(f"s_waitcnt lgkmcnt({3-t})\n{mf32} {r(bufs[t],16)}, {r(WO+4*t)}, {r(Q)}, 0")
    A(f"ds_read_b128 {r(K)}, v3 offset:{TS}\nds_read_b128 {r(V1)}, v{VA} offset:544\nds_read_b128 {r(V0)}, v{VA}\ns_nop 3")
    for t in range(4):
        b=bufs[t]
        for i in range(8):
            d=P0+(i%2)
            A(f"v_max3_f32 v{d}, v{b+2*i}, v{b+2*i+1}, v{d}" if (t or i>1) else f"v_max_f32 v{d}, v{b+2*i}, v{b+2*i+1}")
    def finish_max(off):
        A(f"""v_max_f32 v{P0}, v{P0}, v{P0+1}
        v_mov_b32 v{P0+1}, v{P0}
        s_nop 1
        v_permlane32_swap_b32 v{P0}, v{P0+1}
        s_nop 1
        v_max_f32 v{P0}, v{P0}, v{P0+1}
        v_sub_f32 v{NM}, {off}, v{P0}""")
        for i in range(1,16): A(f"v_mov_b32 v{NM+i}, v{NM}")
        for i in range(16): A(f"v_mov_b32 v{O+i}, 0")
    finish_max("0xc2b00000")
    A(f"{mf32} {r(S[0],16)}, {r(WO)}, {r(Q)}, {r(NM,16)}\ns_nop 11")
    A.stamp()
    def wo_reg(reg,t,s,tag):
        off=t*16384+s*1024
        A(f"s_add_u32 s39, s38, {off & ~4095}\nbuffer_load_dwordx4 {r(reg)}, v3, s[4:7], s39 offen offset:{off&4095}"); vm.add(tag)
    def wo_lds(t,s):
        off=t*16384+s*1024
        A(f"s_add_u32 m0, s40, {(s-NREG)*32768+t*1024}\ns_add_u32 s39, s38, {off}\nbuffer_load_dwordx4 v3, s[4:7], s39 offen lds"); vm.add('wol')
    def pf(sreg,off):
        A(f"buffer_load_dword v{DUM}, v{T}, s[4:7], s{sreg} offen" + (f"\ns_add_u32 s{sreg}, s{sreg}, {off}" if off else "")); vm.add('pf')
    def sh_ld(i):
        A(f"s_add_u32 m0, s48, {1088*i}\ns_nop 0\nbuffer_load_dwordx4 v{SA+2}, s[12:15], s52 offen lds\ns_add_u32 s52, s52, s53"); vm.add('sh')
    def sh_rd(i):
        A(f"ds_read_b64_tr_b16 v[{SH+4*i}:{SH+4*i+1}], v{SA} offset:{64*i}\nds_read_b64_tr_b16 v[{SH+4*i+2}:{SH+4*i+3}], v{SA+1} offset:{64*i}")
    def sh_st(i):
        A(f"buffer_store_dwordx4 {r(SH+4*i)}, v3, s[4:7], s54 offen{ST}\ns_add_u32 s54, s54, s55"); vm.add('shs')
    def xm_ld(i):
        if i==0: A(f"s_add_u32 m0, s27, {LX}\ns_lshl_b32 s36, s24, 10\nbuffer_load_dwordx4 v3, s[8:11], s36 offen lds")
        else: A(f"s_min_u32 s37, s27, {5*1024}\ns_add_u32 m0, s37, {LM}\ns_add_u32 s37, s37, 4096\nbuffer_load_dwordx4 v3, s[4:7], s37 offen lds")
        vm.add('xm')
    slotA={}; slotB={}
    for i in range(4): slotA[2*i]=lambda i=i: sh_ld(i)
    for j in range(6,13): slotB[j-6]=lambda j=j: kv(j)
    slotA[9]=lambda: xm_ld(0); slotA[11]=lambda: xm_ld(1)
    for i in range(4):
        slotA[20+i]=lambda i=i: sh_rd(i)
        slotA[24+i]=lambda i=i: sh_st(i)
        slotA[32+i]=lambda i=i: kv(13+i)
    for i in range(8): slotA[36+i]=lambda i=i: wo_lds(i%4,NREG+i//4)
    for i in range(4): slotA[48+i]=lambda i=i: wo_lds(i,NREG+2)
    for i in range(40): slotB[10+i]=lambda i=i: wo_reg(WO+4*i,i%4,i//4,'wor')
    bars={4:('kv',5),20:'xm',32:None,48:('kv',16)}
    base={KAD:0,VA:0}
    def la(reg,off):
        if off-base[reg]>65000:
            A(f"v_add_u32 v{reg}, {30*TS}, v{reg}"); base[reg]+=30*TS
        return f"v{reg} offset:{off-base[reg]}"
    seg=[0,4,20,32,48,64]
    for t in range(64):
        s=S[t%2]; sn=S[(t+1)%2]
        e=lambda i: A(f"v_exp_f32 v{s+i}, v{s+i}")
        c=lambda i: A(f"v_cvt_pk_bf16_f32 v{P0+i}, v{s+2*i}, v{s+2*i+1}")
        if t in bars:
            A("s_waitcnt lgkmcnt(1)" + (f" vmcnt({vm.n(bars[t])})" if bars[t] else "") + "\ns_barrier")
        if t==48 and FZ:
            A(f"""s_cmp_eq_u32 s3, 0
            s_cselect_b64 exec, 1, 0
            s_and_b32 s56, s2, 15
            s_lshl_b32 s56, s56, 7
            s_add_u32 s56, s56, 0x18000
            v_mov_b32 v{DUM}, 1
            buffer_atomic_add v{DUM}, v1, s[4:7], s56 offen sc1
            s_mov_b64 exec, -1"""); vm.add('sa')
        if t in (48,) and not FZ: A.stamp()
        if PRIO:
            a=max(x for x in seg if x<=t); b=min(x for x in seg if x>t); q=(b-a)//4
            if (t-a)%q==0: A(f"s_setprio {3-(t-a)//q}")
        e(0); e(1)
        A(f"s_waitcnt lgkmcnt(1)\n{mf32} {r(O,16)}, {r(V1)}, {r(P1)}, {r(O,16)}")
        if t in slotA: slotA[t]()
        e(2); e(3); c(0); e(4); e(5)
        if t<63: A(f"{mf32} {r(sn,16)}, {r(K)}, {r(Q)}, {r(NM,16)}")
        if t<62: A(f"ds_read_b128 {r(K)}, {la(KAD,TS*(t+2))}")
        c(1); e(6); e(7)
        if t in slotB: slotB[t]()
        c(2); e(8); e(9); c(3); e(10); e(11)
        A(f"s_waitcnt lgkmcnt({1 if t<62 else 0})\n{mf32} {r(O,16)}, {r(V0)}, {r(P0)}, {r(O,16)}")
        A(f"ds_read_b128 {r(V1)}, {la(VA,TS*t+544)}")
        A(f"ds_read_b128 {r(V0)}, {la(VA,TS*min(t+1,63))}")
        c(4); e(12); e(13); c(5); e(14); e(15); c(6); c(7)
    VBASE=base[VA]
    A(f"s_waitcnt lgkmcnt(0)\ns_nop 0\n{mf32} {r(O,16)}, {r(V1)}, {r(P1)}, {r(O,16)}")
    A.stamp()
    A("s_nop 11")
    A(f"""v_max3_f32 v{P0}, |v{O}|, |v{O+1}|, |v{O+2}|
    v_max3_f32 v{P0}, |v{O+3}|, |v{O+4}|, v{P0}
    v_max3_f32 v{P0}, |v{O+5}|, |v{O+6}|, v{P0}
    v_max_f32 v{P0}, |v{O+7}|, v{P0}
    v_add_f32 v{P0+1}, v{O}, v{O+1}
    v_add_f32 v{P0+2}, v{O+2}, v{O+3}
    v_add_f32 v{P0+3}, v{O+4}, v{O+5}
    v_add_f32 v{P1}, v{O+6}, v{O+7}
    v_add_f32 v{P0+1}, v{P0+1}, v{P0+2}
    v_add_f32 v{P0+3}, v{P0+3}, v{P1}
    v_add_f32 v{P0+1}, v{P0+1}, v{P0+3}
    v_add_f32 v{P0+1}, v{P0+1}, v{O+8}
    v_mov_b32 v{P0+2}, 0x207
    v_cmp_class_f32 s[36:37], v{P0+1}, v{P0+2}
    v_cmp_gt_f32 vcc, 0x0f800000, v{P0}
    s_nop 1
    s_or_b64 s[36:37], s[36:37], vcc
    s_cmp_lg_u64 s[36:37], 0
    s_cbranch_scc1 k2_slow""")
    if os.environ.get('FORCESLOW'): A("s_branch k2_slow")
    A("k2_tail:")
    LATE=8
    A(f"v_mov_b32 v{P1}, v{O+8}\ns_nop 1\nv_permlane32_swap_b32 v{O+8}, v{P1}\ns_nop 1\nv_rcp_f32 v{P1}, v{O+8}\nv_lshlrev_b32 v2, 7, v1")
    for i in range(8): A(f"v_mul_f32 v{O+i}, v{O+i}, v{P1}")
    A.pack8(P0,O)
    A(f"""s_lshl_b32 s37, s3, 4
    s_add_u32 s37, s37, {LDS_O}
    v_add_u32 v2, s37, v2
    ds_write_b128 v2, {r(P0)}
    v_lshlrev_b32 v{T}, 5, v1
    v_lshrrev_b32 v2, 4, v1
    v_lshlrev_b32 v2, 7, v2
    v_and_b32 v{DUM}, 7, v1
    v_lshl_add_u32 v2, v{DUM}, 4, v2
    v_add_u32 v2, {LDS_O}, v2
    v_add_u32 v{VA}, s40, v3
    v_add_u32 v{KAD}, 0x10000, v{VA}""")
    late=[(s,t) for s in range(NREG+NLDS,16) for t in range(4)]
    def late_ld(n):
        for _ in range(n):
            if late:
                s,t=late.pop(0); wo_reg(LATE+16*(s-NREG-NLDS)+4*t,t,s,('late',s))
    late_ld(2)
    A("s_waitcnt lgkmcnt(0)\ns_barrier")
    A.stamp()
    XR=4; GA=160; SB=168; CB=176; ACC=56; Bf=[72,76,80,84,88]; NBF=5
    lq=[]
    def dsr(reg,addr,off,tag): A(f"ds_read_b128 {r(reg)}, v{addr} offset:{off}"); lq.append(tag)
    def lw(tag): return min(15,len(lq)-1-max(i for i,t in enumerate(lq) if t==tag))
    for s in range(NBF): dsr(Bf[s],2,512*s,('b',s))
    for s in range(16):
        if s<NREG: wreg=WO+16*s
        elif s<NREG+NLDS: wreg=WO+16*(s-NREG)
        else: wreg=LATE+16*(s-NREG-NLDS)
        n=lw(('b',s))
        if NREG<=s<NREG+NLDS: n=min(n,lw(('w',s)))
        w=f"s_waitcnt lgkmcnt({n})"
        if s==0: w+=f" vmcnt({min(vm.n('wol'),vm.n('wor'))})"
        if s>=NREG+NLDS: w+=f" vmcnt({vm.n(('late',s))})"
        A(w)
        for t in range(4):
            A(f"v_mfma_f32_16x16x32_bf16 {r(ACC+4*t)}, {r(wreg+4*t)}, {r(Bf[s%NBF])}, {'0' if s==0 else r(ACC+4*t)}")
        late_ld(2)
        if s+NBF<16: dsr(Bf[s%NBF],2,512*(s+NBF),('b',s+NBF))
        if 2<=s<2+2*NLDS:
            s2=(s-2)//2
            for t in (0,1) if s%2==0 else (2,3): dsr(WO+16*s2+4*t,VA if s2<2 else KAD,(s2%2)*32768+t*1024,('w',NREG+s2))
        if s==11 and FZ:
            A("""v_lshlrev_b32 v250, 7, v1
            s_cmp_eq_u32 s3, 0
            s_cselect_b64 exec, 0xffff, 0
            s_mov_b32 s57, 0x18000
            buffer_load_dword v251, v250, s[4:7], s57 offen sc0 sc1
            s_mov_b64 exec, -1"""); vm.add('sp')
        if s==12:
            A(f"v_add_u32 v{DUM}, {LM}, v{T}\ns_add_u32 s37, s27, {LX}\nv_add_u32 v{VA}, s37, v3")
            dsr(XR,VA,0,'e')
            for i in range(6): dsr(GA+4*i,DUM,(i//2)*2048+(i%2)*16,'e')
    A.stamp()
    A(f"""v_and_b32 v2, 15, v1
    v_mul_u32_u24 v2, 2064, v2
    v_lshrrev_b32 v{DUM}, 4, v1
    v_lshl_add_u32 v2, v{DUM}, 6, v2
    s_lshl_b32 s37, s3, 8
    s_add_u32 s37, s37, {LDS_Y}
    v_add_u32 v2, s37, v2
    s_mov_b32 s42, 0x00ff00ff
    s_mov_b32 s43, 0x00ff00ff
    s_mov_b64 exec, s[42:43]""")
    for t in range(4): A(f"ds_write_b128 v2, {r(ACC+4*t)} offset:{16*t}")
    A(f"""s_mov_b64 exec, -1
    s_mul_i32 s37, s3, 2064
    s_add_u32 s37, s37, {LDS_Y}
    v_add_u32 v2, s37, v{T}""")
    if FZ:
        A(f"""s_bfe_u32 s56, s2, 0x10002
        s_mul_i32 s56, s56, 7
        s_lshr_b32 s36, s2, 5
        s_add_u32 s56, s56, s36
        s_lshl_b32 s56, s56, 3
        s_add_u32 s56, s56, s3
        s_lshl_b32 s56, s56, 15
        s_add_u32 s56, s56, {hex(W13F)}
        s_cmp_lg_u32 s3, 0
        s_cbranch_scc1 k2_pd
        s_mov_b32 s36, 200000
        s_mov_b64 exec, 0xffff
        k2_pl:
        s_waitcnt vmcnt(0)
        v_cmp_ne_u32 vcc, 16, v251
        s_cbranch_vccz k2_pd
        buffer_load_dword v251, v250, s[4:7], s57 offen sc0 sc1
        s_sub_u32 s36, s36, 1
        s_cmp_lg_u32 s36, 0
        s_cbranch_scc1 k2_pl
        k2_pd:
        s_mov_b64 exec, -1""")
    A("""s_waitcnt lgkmcnt(0)
    s_barrier
    ds_read_b128 v[24:27], v2
    ds_read_b128 v[28:31], v2 offset:16""")
    if FZ:
        for q in range(NW1):
            A(f"buffer_load_dwordx4 v[{128+4*q}:{131+4*q}], v3, s[4:7], s56 offen offset:{(q%4)*1024}")
            if q%4==3: A("s_add_u32 s56, s56, 4096")
    A.stamp()
    A.unpack8(40,XR)
    A("s_waitcnt lgkmcnt(0)")
    for j in range(8): A(f"v_fmac_f32 v{40+j}, v{24+j}, v{GA+j}")
    A.pack8(32,40); A.unpack8(24,32)
    A(f"s_lshl_b32 s36, s24, 10\ns_add_u32 s36, s36, {hex(X1)}\nbuffer_store_dwordx4 v[32:35], v3, s[4:7], s36 offen{ST2}")
    A("v_add_f32 v40, v24, v25\nv_add_f32 v41, v26, v27\nv_add_f32 v42, v28, v29\nv_add_f32 v43, v30, v31\nv_add_f32 v40, v40, v41\nv_add_f32 v42, v42, v43\nv_add_f32 v40, v40, v42")
    A.wave_sum([40])
    A.stamp()
    A("v_mul_f32 v40, 0x3b000000, v40\ns_nop 0\nv_readlane_b32 s44, v40, 63\ns_nop 1")
    for j in range(8): A(f"v_subrev_f32 v{24+j}, s44, v{24+j}")
    A("v_mul_f32 v40, v24, v24\nv_mul_f32 v41, v25, v25")
    for j in range(2,8): A(f"v_fmac_f32 v{40+j%2}, v{24+j}, v{24+j}")
    A("v_add_f32 v40, v40, v41")
    A.wave_sum([40])
    A("""v_mov_b32 v41, 0x3727c5ac
    v_fmac_f32 v41, 0x3b000000, v40
    v_rsq_f32 v41, v41
    v_mul_u32_u24 v2, 144, v1
    s_lshl_b32 s37, s3, 4
    v_readlane_b32 s44, v41, 63""")
    A(f"s_add_u32 s37, s37, {LDS_H}\ns_mul_i32 s27, s3, {8*144}\ns_add_u32 s27, s27, {LDS_H}")
    for j in range(8): A(f"v_mul_f32 v{24+j}, v{24+j}, v{CB+j}")
    for j in range(8): A(f"v_fmac_f32 v{SB+j}, s44, v{24+j}")
    A.pack8(36,SB)
    A.stamp()
    A(f"""v_add_u32 v2, s37, v2
    ds_write_b128 v2, v[36:39]
    v_add_u32 v2, s27, v3
    v_lshrrev_b32 v40, 3, v1
    v_lshl_add_u32 v2, v40, 4, v2
    v_lshlrev_b32 v40, 9, v40
    v_and_b32 v41, 7, v1
    v_lshl_add_u32 v40, v41, 4, v40
    s_lshl_b32 s37, s3, 12
    s_lshl_b32 s36, s3, 4
    s_sub_u32 s25, s25, s36
    s_add_u32 s25, s25, s37
    s_add_u32 s25, s25, {hex(H2F)}
    s_waitcnt lgkmcnt(0)
    s_barrier
    ds_read_b128 v[36:39], v2
    s_waitcnt lgkmcnt(0)
    buffer_store_dwordx4 v[36:39], v40, s[4:7], s25 offen{ST2}""")
    if FZ:
        A.ns=1; A.stamp()
        A.ldptr(8,'out')
        A("""s_lshl_b32 s36, s24, 4
        s_add_u32 s36, s36, 0x10000
        v_mov_b32 v40, 1
        s_cmp_eq_u32 s3, 0
        s_cselect_b64 s[42:43], 1, 0
        s_waitcnt vmcnt(0)
        s_barrier
        s_mov_b64 exec, s[42:43]
        buffer_store_dword v40, v1, s[4:7], s36 offen sc0 sc1
        s_mov_b64 exec, -1""")
        A.stamp()
        k3f.k3f(A,NW1)
    else: A.stamp_end('k2',wave=int(os.environ.get('SW','0')))
    A("k2_end:\ns_endpgm")
    A(f"k2_slow:\nv_subrev_u32 v{VA}, {VBASE}, v{VA}")
    A(f"v_mov_b32 v{P0}, 0xff800000\nv_mov_b32 v{P0+1}, 0xff800000\ns_mov_b32 s41, {hex(KV)}")
    A(f"""k2_s1:
    buffer_load_dwordx4 {r(K)}, v3, s[4:7], s41 offen
    s_waitcnt vmcnt(0)
    {mf32} {r(S[0],16)}, {r(K)}, {r(Q)}, 0
    s_add_u32 s41, s41, {TS}
    s_nop 11""")
    for i in range(8): A(f"v_max3_f32 v{P0}, v{S[0]+2*i}, v{S[0]+2*i+1}, v{P0}")
    A(f"s_cmp_lt_u32 s41, {hex(KV+64*TS)}\ns_cbranch_scc1 k2_s1")
    finish_max("0")
    A(f"""s_mov_b32 s41, {hex(KV)}
    k2_s2:
    buffer_load_dwordx4 {r(K)}, v3, s[4:7], s41 offen
    buffer_load_dwordx4 {r(V0)}, v{VA}, s[4:7], s41 offen
    buffer_load_dwordx4 {r(V1)}, v{VA}, s[4:7], s41 offen offset:544
    s_waitcnt vmcnt(0)
    {mf32} {r(S[0],16)}, {r(K)}, {r(Q)}, {r(NM,16)}
    s_add_u32 s41, s41, {TS}
    s_nop 11""")
    for i in range(16): A(f"v_exp_f32 v{S[0]+i}, v{S[0]+i}")
    for i in range(8): A(f"v_cvt_pk_bf16_f32 v{P0+i}, v{S[0]+2*i}, v{S[0]+2*i+1}")
    A(f"""s_nop 1
    {mf32} {r(O,16)}, {r(V0)}, {r(P0)}, {r(O,16)}
    {mf32} {r(O,16)}, {r(V1)}, {r(P1)}, {r(O,16)}
    s_cmp_lt_u32 s41, {hex(KV+64*TS)}
    s_nop 7
    s_cbranch_scc1 k2_s2
    s_nop 7
    s_branch k2_tail""")
    return A.text(), kernel_desc("k2_kernel", 256), "; @launch kernel=k2_kernel grid=(256,1,1) block=(512,1,1) lds=163840"
```

```python
from common import *
class VM:
    def __init__(s): s.q=[]
    def add(s,tag,n=1): s.q+= [tag]*n
    def n(s,tag):
        last=max(i for i,t in enumerate(s.q) if t==tag)
        return len(s.q)-1-last
ST=os.environ.get('ST3',' sc0 sc1')
def silu_ops(g,t,p):
    ops=[]
    for j in range(8): ops.append(f"v_mul_f32 v{t+j}, 0xbfb8aa3b, v{g+j}")
    for j in range(8): ops.append(f"v_exp_f32 v{t+j}, v{t+j}")
    for j in range(8): ops.append(f"v_add_f32 v{t+j}, 1.0, v{t+j}")
    for j in range(8): ops.append(f"v_rcp_f32 v{t+j}, v{t+j}")
    for j in range(8): ops.append(f"v_mul_f32 v{g+j}, v{g+j}, v{g+8+j}")
    for j in range(8): ops.append(f"v_mul_f32 v{t+j}, v{t+j}, v{g+j}")
    for i in range(4): ops.append(f"v_cvt_pk_bf16_f32 v{p+i}, v{t+2*i}, v{t+2*i+1}")
    return ops
def k3f(A=None,NW1=0):
    FZ=A is not None; vm=VM(); NW2=int(os.environ.get('NW2','8')) if FZ else 0
    if not FZ: A=Asm()
    W=128; ACC=64; B=8
    if not FZ: A("s_cmp_ge_u32 s2, 256\ns_cbranch_scc1 k3_end")
    if not FZ: A.stamp()
    if not FZ: A.ldptr(4,'ws'); A.ldptr(8,'out')
    if not FZ: A("v_and_b32 v1, 63, v0\nv_lshrrev_b32 v2, 6, v0\ns_nop 0\nv_readfirstlane_b32 s3, v2")
    A(f"""s_and_b32 s20, s2, 3
    s_lshl_b32 s20, s20, 2
    s_bfe_u32 s21, s2, 0x20003
    s_add_u32 s20, s20, s21
    s_bfe_u32 s21, s2, 0x10002
    s_mul_i32 s21, s21, 7
    s_lshr_b32 s22, s2, 5
    s_add_u32 s21, s21, s22
    s_lshl_b32 s21, s21, 3
    s_add_u32 s21, s21, s3
    v_lshlrev_b32 v3, 4, v1
    v_add_u32 v4, 0x10000, v3
    s_lshl_b32 s22, s3, 10
    s_lshl_b32 s23, s20, 17
    s_add_u32 s23, s23, s22
    s_add_u32 s23, s23, {hex(H2F)}
    s_lshl_b32 s24, s21, 15
    s_add_u32 s24, s24, {hex(W13F)}
    s_lshl_b32 s25, s20, 2
    s_mul_i32 s25, s25, {112*1024}
    s_lshl_b32 s26, s21, 10
    s_add_u32 s25, s25, s26
    s_add_u32 s25, s25, {hex(HMF)}
    s_waitcnt lgkmcnt(0)""")
    A.srd(4,WSEND); A.srd(8,2097152)
    PFY=int(os.environ.get('PFY','14')); PFS=int(os.environ.get('PFS','28')); PFY0=int(os.environ.get('PFY0','0'))
    M2 = '''s_bfe_u32 s41, s2, 0x30003
    s_add_u32 s40, s40, s41
    s_bfe_u32 s41, s2, 0x10002
    s_lshl_b32 s41, s41, 2
    s_lshr_b32 s42, s2, 6
    s_add_u32 s41, s41, s42
''' if os.environ.get('MAP','1')=='0' else 's_bfe_u32 s41, s2, 0x20003\ns_add_u32 s40, s40, s41\ns_and_b32 s41, s2, 4\ns_add_u32 s40, s40, s41\ns_lshr_b32 s41, s2, 5'
    A(f"""s_and_b32 s40, s2, 3
    s_lshl_b32 s40, s40, 3
    {M2}
    v_add_u32 v7, {112*1024}, v3
    s_mul_i32 s42, s3, {7*1024}
    s_bfe_u32 s50, s2, 0x10002
    s_mul_i32 s50, s50, {56*1024}
    s_add_u32 s42, s42, s50
    s_lshl_b32 s50, s50, 1
    s_sub_u32 s50, {56*1024}, s50
    s_mul_i32 s32, s40, {2*112*1024}
    s_add_u32 s32, s32, s42
    s_add_u32 s32, s32, {hex(HMF)}
    s_mul_i32 s36, s41, {2*112*1024}
    s_add_u32 s36, s36, s42
    s_add_u32 s36, s36, {hex(W2F)}
    s_add_u32 s33, s32, 4096
    s_add_u32 s34, s32, s50
    s_add_u32 s35, s34, 4096
    s_add_u32 s37, s36, 4096
    s_add_u32 s38, s36, s50
    s_add_u32 s39, s38, 4096
    s_lshr_b32 s50, s2, 7
    s_mul_i32 s50, s50, {112*1024}
    s_bfe_u32 s51, s2, 0x10006
    s_mul_i32 s51, s51, 3584
    s_add_u32 s50, s50, s51
    s_add_u32 s50, s50, s34
    s_lshr_b32 s43, s40, 1
    s_lshl_b32 s43, s43, 11
    s_add_u32 s43, s43, 0x8000
    s_lshl_b32 s44, s20, 11
    s_add_u32 s44, s44, 0x8000
    v_and_b32 v5, 31, v1
    v_lshlrev_b32 v5, 10, v5
    v_lshrrev_b32 v6, 5, v1
    v_lshl_add_u32 v5, v6, 5, v5
    v_lshlrev_b32 v6, 6, v6
    s_lshl_b32 s45, s40, 1
    s_bfe_u32 s46, s3, 0x10001
    s_add_u32 s45, s45, s46
    s_lshl_b32 s45, s45, 15
    s_lshl_b32 s46, s41, 1
    s_lshr_b32 s47, s3, 2
    s_add_u32 s46, s46, s47
    s_lshl_b32 s46, s46, 2
    s_and_b32 s47, s3, 1
    s_add_u32 s46, s46, s47
    s_lshl_b32 s47, s46, 4
    s_add_u32 s45, s45, s47
    s_lshl_b32 s46, s46, 5
    s_add_u32 s46, s46, {5*2048}
    s_add_u32 s47, s45, {hex(X1)}
    s_cmp_ge_u32 s2, 224
    s_cbranch_scc1 k3_np""")
    def w2l(j):
        s_,nt=j//2,j%2
        return f"buffer_load_dwordx4 v[{W+4*j}:{W+4*j+3}], v{7 if nt else 3}, s[4:7], s{36+2*(s_//7)+(s_%7)//4} offen offset:{((s_%7)%4)*1024}"
    def dma(rt,q,tag):
        off=rt*32768+q*8192
        A(f"s_add_u32 m0, s22, {off}\ns_add_u32 s26, s23, {off}\nbuffer_load_dwordx4 v3, s[4:7], s26 offen lds"); vm.add(tag)
    def wl(s):
        A(f"buffer_load_dwordx4 v[{W+4*s}:{W+4*s+3}], v3, s[4:7], s24 offen offset:{(s%4)*1024}"); vm.add(('w',s))
        if s%4==3: A("s_add_u32 s24, s24, 4096")
    L=[]
    for q in range(4):
        L+= [lambda rt=rt,q=q: dma(rt,q,('a',q)) for rt in range(3)]
        L+= [lambda s=s: wl(s) for s in range(8*q,8*q+8) if s>=NW2]
    L+= [lambda q=q: dma(3,q,'a3') for q in range(4)]
    PRE=int(os.environ.get('K3PRE','4' if FZ else '11'))
    if FZ:
        A(f"s_add_u32 s24, s24, {NW1//4*4096}\ns_cmp_eq_u32 s3, 0\ns_cbranch_scc1 k3_hp")
        n0=len(A.L)
        for s in range(NW1,NW2): wl(s)
        WL=A.L[n0:]
        A("""s_barrier
        s_branch k3_hg
        k3_hp:
        s_lshl_b32 s48, s20, 11
        s_add_u32 s48, s48, 0x10000
        s_mov_b32 s49, 200000
        v_and_b32 v10, 15, v1
        v_lshlrev_b32 v10, 7, v10
        k3_hl:
        buffer_load_dword v11, v10, s[4:7], s48 offen sc0 sc1
        s_sub_u32 s49, s49, 1
        s_cmp_eq_u32 s49, 0
        s_cbranch_scc1 k3_hd
        s_waitcnt vmcnt(0)
        v_cmp_eq_u32 vcc, 0, v11
        s_cbranch_vccnz k3_hl
        k3_hd:
        s_waitcnt vmcnt(0)
        s_barrier""")
        A.L+=WL
        A("k3_hg:")
        A.stamp()
    for f in L[:PRE]: f()
    if int(os.environ.get('TLB','0')):
        A("v_mul_u32_u24 v60, 114688, v1\ns_mov_b64 exec, 15\nbuffer_load_dword v61, v60, s[4:7], s25 offen sc0 sc1\ns_mov_b64 exec, -1"); vm.add('tlb')
    L=L[PRE:]
    def rd(s):
        for rt in range(3):
            b=B+12*(s%2)+4*rt
            A(f"ds_read_b128 v[{b}:{b+3}], v{3 if rt<2 else 4} offset:{(rt%2)*32768+s*1024}")
    for s in range(32):
        q=s//8
        if s%8==0:
            A(f"s_waitcnt vmcnt({vm.n(('a',q))})\ns_barrier")
            if s==0: A.stamp()
            rd(s)
        if s%8!=7: rd(s+1)
        if s>=NW2: A(f"s_waitcnt vmcnt({vm.n(('w',s))})")
        for rt in range(3):
            b=B+12*(s%2)+4*rt
            A(f"s_waitcnt lgkmcnt({(3 if s%8!=7 else 0)+2-rt})")
            A(f"v_mfma_f32_32x32x16_bf16 v[{ACC+16*rt}:{ACC+16*rt+15}], v[{W+4*s}:{W+4*s+3}], v[{b}:{b+3}], {'0' if s==0 else f'v[{ACC+16*rt}:{ACC+16*rt+15}]'}")
            if rt<(2 if s%2 else 1) and L: L.pop(0)()
    assert not L
    A.stamp()
    A(f"s_waitcnt vmcnt(0)\ns_barrier")
    E=[]
    for rt in range(3):
        E+=silu_ops(ACC+16*rt,32,40+4*rt)
        E+=[f"buffer_store_dwordx4 v[{40+4*rt}:{43+4*rt}], v3, s[4:7], s25 offen{ST}\ns_add_u32 s25, s25, {112*1024}"]
    NB=6; YS=int(os.environ.get('YS','2')); assert PFY0+(PFY-1)*YS<32
    rd3=lambda s: A(f"ds_read_b128 v[{B+4*(s%NB)}:{B+4*(s%NB)+3}], v4 offset:{32768+s*1024}")
    for s in range(NB): rd3(s)
    A("s_nop 1")
    a3=ACC+48
    for s in range(32):
        b=B+4*(s%NB)
        A(f"s_waitcnt lgkmcnt({min(NB-1,31-s)})")
        A(f"v_mfma_f32_32x32x16_bf16 v[{a3}:{a3+15}], v[{W+4*s}:{W+4*s+3}], v[{b}:{b+3}], {'0' if s==0 else f'v[{a3}:{a3+15}]'}")
        if s+NB<32: rd3(s+NB)
        if s>=PFY0 and (s-PFY0)%YS==0 and (s-PFY0)//YS<PFY: A(w2l((s-PFY0)//YS))
        n = 5 if s<29 else 0
        for _ in range(n):
            if E: A(E.pop(0))
    while E: A(E.pop(0))
    A.stamp()
    for o in silu_ops(a3,32,52): A(o)
    A(f"buffer_store_dwordx4 v[52:55], v3, s[4:7], s25 offen{ST}")
    A.stamp()
    A("s_waitcnt vmcnt(0)\ns_barrier")
    A.stamp()
    FLAG=int(os.environ.get('FLAG','1')); PALL=int(os.environ.get('PALL','0'))
    A(f"""s_cmp_lg_u32 s3, 0
    s_cbranch_scc1 k3_sy
    s_mov_b64 exec, 1
    s_lshl_b32 s48, s21, 4
    v_mov_b32 v8, {'s48' if FLAG else '0'}
    v_mov_b32 v9, 1
    {'buffer_store_dword v9, v8, s[4:7], s44 offen sc0 sc1' if FLAG else 'buffer_atomic_add v9, v8, s[4:7], s44 offen sc1'}
    s_mov_b64 exec, -1
    s_branch k3_sy
    k3_np:""")
    NPF=int(os.environ.get('NPF','1'))
    if NPF:
        A(f"""s_bfe_u32 s48, s2, 0x20003
        s_lshl_b32 s48, s48, 3
        s_add_u32 s48, s48, s3
        s_mul_i32 s48, s48, {56*1024}
        s_add_u32 s48, s48, {hex(W2F)}
        v_lshlrev_b32 v4, 7, v1""")
        for r in range(7):
            A("buffer_load_dword v252, v4, s[4:7], s48 offen\ns_add_u32 s48, s48, 8192")
            if (r+1)%NPF==0: A("s_waitcnt vmcnt(0)")
    for j in range(PFY): A(w2l(j))
    A("k3_sy:\nv_min_u32 v4, 27, v1\nv_lshlrev_b32 v4, 7, v4")
    vm=VM()
    A("""buffer_load_dwordx4 v[56:59], v6, s[4:7], s46 offen
    buffer_load_dwordx4 v[60:63], v6, s[4:7], s46 offen offset:16""")
    PW=int(os.environ.get('PW','0'))
    chk = "v_cmp_eq_u32 vcc, 0, v11\ns_cbranch_vccnz k3_pl" if FLAG else "v_readfirstlane_b32 s49, v11\ns_cmp_lt_u32 s49, 14\ns_cbranch_scc1 k3_pl"
    poll=f"""s_mov_b32 s48, 200000
    {'v_min_u32 v10, 13, v1' if FLAG else 'v_mov_b32 v10, 0'}
    v_lshlrev_b32 v10, 7, v10
    k3_pl:
    buffer_load_dword v11, v10, s[4:7], s43 offen sc0 sc1
    s_sub_u32 s48, s48, 1
    s_cmp_eq_u32 s48, 0
    s_cbranch_scc1 k3_pd
    s_waitcnt vmcnt(0)
    {chk}
    k3_pd:
    s_waitcnt vmcnt(0)"""
    if PALL:
        for j in range(PFY,PFS): A(w2l(j))
        A(poll)
    else:
        A(f"s_cmp_eq_u32 s3, {PW}\ns_cbranch_scc1 k3_poll")
        for j in range(PFY,PFS): A(w2l(j))
        A("s_barrier\ns_branch k3_go\nk3_poll:")
        A(poll); A("s_barrier")
        for j in range(PFY,PFS): A(w2l(j))
    A("k3_go:\nbuffer_load_dwordx4 v[52:55], v5, s[4:7], s47 offen")
    A.stamp()
    slots=[8+4*i for i in range(11)]+[240,244,248]
    def hl(s_):
        for j in (2*s_,2*s_+1):
            if j>=PFS: A(w2l(j)); vm.add(('h',s_))
        for rt in range(2):
            r=slots[(2*s_+rt)%14]
            A(f"buffer_load_dwordx4 v[{r}:{r+3}], v{7 if rt else 3}, s[4:7], s{32+2*(s_//7)+(s_%7)//4} offen offset:{((s_%7)%4)*1024}"); vm.add(('h',s_))
    CP=int(os.environ.get('CP','9'))
    for s_ in range(7):
        if s_==CP: A("buffer_load_dword v252, v4, s[4:7], s50 offen"); vm.add('cp')
        hl(s_)
    for s_ in range(14):
        A(f"s_waitcnt vmcnt({vm.n(('h',s_))})")
        if s_ in (0,7): A.stamp()
        for ti in range(4):
            a=W+4*(2*s_+(ti>>1)); b=slots[(2*s_+(ti&1))%14]; c=ACC+16*ti
            A(f"v_mfma_f32_32x32x16_bf16 v[{c}:{c+15}], v[{a}:{a+3}], v[{b}:{b+3}], {'0' if s_==0 else f'v[{c}:{c+15}]'}")
        if s_+7<14: hl(s_+7)
    A.stamp()
    A("s_lshl_b32 s22, s3, 10\nv_add_u32 v8, s22, v3\nv_add_u32 v9, 0x10000, v8\ns_lshl_b32 s22, s3, 14\nv_add_u32 v2, s22, v3")
    A.unpack8(128,52)
    A("s_nop 4")
    for ti in range(4):
        if ti==3: A("s_nop 7")
        for i in range(4): A(f"ds_write_b128 v{8+(ti>>1)}, v[{ACC+16*ti+4*i}:{ACC+16*ti+4*i+3}] offset:{32768*(ti&1)+8192*i}")
    A("s_waitcnt lgkmcnt(0)\ns_barrier")
    for i in range(2):
        for w in range(8): A(f"ds_read_b128 v[{ACC+32*i+4*w}:{ACC+32*i+4*w+3}], v2 offset:{8192*i+1024*w}")
    for i in range(2):
        b=ACC+32*i
        A(f"s_waitcnt lgkmcnt({12-8*i})")
        for j in range(4): A(f"v_add_f32 v{b+j}, v{b+j}, v{b+4+j}\nv_add_f32 v{b+8+j}, v{b+8+j}, v{b+12+j}")
        A(f"s_waitcnt lgkmcnt({8-8*i})")
        for j in range(4): A(f"v_add_f32 v{b+16+j}, v{b+16+j}, v{b+20+j}\nv_add_f32 v{b+24+j}, v{b+24+j}, v{b+28+j}")
        for j in range(4): A(f"v_add_f32 v{b+j}, v{b+j}, v{b+8+j}\nv_add_f32 v{b+16+j}, v{b+16+j}, v{b+24+j}")
        for j in range(4): A(f"v_add_f32 v{b+j}, v{b+j}, v{b+16+j}")
        for j in range(4): A(f"v_fmac_f32 v{128+4*i+j}, v{b+j}, v{56+4*i+j}")
    A.pack8(136,128)
    A("buffer_store_dwordx4 v[136:139], v5, s[8:11], s45 offen")
    A.stamp_end('k3',wave=int(os.environ.get('SW3','0')))
    if FZ: return
    A("k3_end:\ns_endpgm")
    return A.text(), kernel_desc("k3_kernel", 256), "; @launch kernel=k3_kernel grid=(256,1,1) block=(512,1,1) lds=131072"
```

```python
from common import *
PF=int(os.environ.get('PF','0'))
ST2=os.environ.get('ST2',' sc0 sc1')
PRIO=int(os.environ.get('PRIO','1'))
BAR=int(os.environ.get('BAR','1'))
import k3f
FZ=int(os.environ.get('FUSE23','1')); NW1=int(os.environ.get('NW1','8'))
def k2():
    A=Asm(); vm=VM()
    Q=4; NM=8; S=[24,40]; O=56; P0=72; P1=76; K=80; V0=84; V1=88; VA=92; DUM=93; T=94
    KAD=95; WO=96; NREG=10; NLDS=3
    STG=106496; LX=141312; LM=LX+8192; LDS_O=LM+6144; LDS_Y=98304; LDS_H=115712
    mf32="v_mfma_f32_32x32x16_bf16"
    r=lambda a,n=4: f"v[{a}:{a+n-1}]"
    A("s_cmp_ge_u32 s2, 256\ns_cbranch_scc1 k2_end")
    A.stamp()
    A.ldptr(4,'ws'); A.ldptr(8,'x'); A.ldptr(16,'w1'); A.ldptr(18,'w3'); A.ldptr(20,'w2')
    A("v_and_b32 v1, 63, v0\nv_lshrrev_b32 v2, 6, v0\ns_nop 0\nv_readfirstlane_b32 s3, v2")
    A(f"""s_lshl_b32 s24, s2, 3
    s_add_u32 s24, s24, s3
    v_lshlrev_b32 v3, 4, v1
    v_and_b32 v2, 31, v1
    v_lshrrev_b32 v{T}, 1, v2
    v_lshlrev_b32 v{T}, 11, v{T}
    v_and_b32 v{VA}, 1, v2
    v_lshl_add_u32 v{T}, v{VA}, 9, v{T}
    v_lshrrev_b32 v{VA}, 5, v1
    v_lshl_add_u32 v{T}, v{VA}, 10, v{T}
    s_lshr_b32 s25, s24, 5
    s_lshl_b32 s25, s25, 15
    s_and_b32 s26, s24, 31
    s_lshl_b32 s26, s26, 4
    s_add_u32 s25, s25, s26
    s_add_u32 s26, s25, {hex(QF)}
    s_lshl_b32 s27, s3, 10
    s_add_u32 s28, s27, {hex(KV)}
    s_mov_b32 m0, s27
    s_waitcnt lgkmcnt(0)""")
    A.srd(4,WSEND); A.srd(8,2097152)
    def kv(it):
        if it: A(f"s_add_u32 m0, s27, {8192*it}\ns_add_u32 s28, s28, 8192")
        A("buffer_load_dwordx4 v3, s[4:7], s28 offen lds"); vm.add(('kv',it))
    kv(0); kv(1)
    A(f"buffer_load_dwordx4 {r(Q)}, v{T}, s[4:7], s26 offen"); vm.add('q')
    A(f"""v_cmp_lt_u32 vcc, 16, v2
    v_cmp_eq_u32 s[30:31], 16, v2
    v_min_u32 v2, 16, v2
    v_cndmask_b32 v{VA}, v{VA}, 1, vcc
    v_cndmask_b32 v{VA}, v{VA}, 0, s[30:31]
    v_mul_u32_u24 v{VA}, 272, v{VA}
    v_lshl_add_u32 v{VA}, v2, 4, v{VA}
    v_add_u32 v{VA}, 1024, v{VA}
    v_mov_b32 v{KAD}, v3
    s_lshl_b32 s38, s3, 16
    s_add_u32 s38, s38, {hex(WOF)}
    s_lshl_b32 s40, s3, 12""")
    for i in range(4): A(f"v_mov_b32 v{P1+i}, 0")
    SH=240; SA=236
    A(f"""s_lshr_b32 s45, s3, 2
    s_lshl_b32 s46, s45, 8
    s_add_u32 s46, s46, s2
    s_and_b32 s47, s3, 3
    s_mul_i32 s48, s45, {17408}
    s_add_u32 s48, s48, {STG}
    v_lshrrev_b32 v{SH}, 5, v1
    v_bfe_u32 v{SH+1}, v1, 4, 1
    v_bfe_u32 v{SH+2}, v1, 2, 2
    v_and_b32 v{SH+3}, 3, v1
    s_mov_b32 s14, 1835008
    s_mov_b32 s15, 0x00020000
    s_cmp_ge_u32 s46, 224
    s_cbranch_scc1 k2_shw2
    s_cmp_lt_u32 s47, 2
    s_cselect_b32 s12, s16, s18
    s_cselect_b32 s13, s17, s19
    s_and_b32 s50, s46, 31
    s_lshr_b32 s51, s46, 5
    s_mul_i32 s52, s50, {16*3584}
    s_and_b32 s53, s47, 1
    s_mul_i32 s53, s53, {8*3584}
    s_add_u32 s52, s52, s53
    s_lshl_b32 s53, s51, 9
    s_add_u32 s52, s52, s53
    s_movk_i32 s53, 7168
    v_and_b32 v{SA+2}, 31, v1
    v_lshlrev_b32 v{SA+2}, 4, v{SA+2}
    v_mul_u32_u24 v{SA}, 3584, v{SH}
    v_add_u32 v{SA+2}, v{SA+2}, v{SA}
    v_lshrrev_b32 v{SA}, 1, v{SH+2}
    v_lshl_add_u32 v{SA}, v{SH}, 2, v{SA}
    v_lshl_add_u32 v{SA}, v{SH+1}, 3, v{SA}
    v_mul_u32_u24 v{SA}, 1088, v{SA}
    v_and_b32 v{SA+1}, 1, v{SH+2}
    v_lshl_add_u32 v{SA}, v{SA+1}, 9, v{SA}
    v_and_b32 v{SA+1}, 1, v{SH+3}
    v_lshl_add_u32 v{SA}, v{SA+1}, 4, v{SA}
    v_lshrrev_b32 v{SA+1}, 1, v{SH+3}
    v_lshl_add_u32 v{SA}, v{SA+1}, 3, v{SA}
    s_lshr_b32 s54, s47, 1
    s_lshl_b32 s54, s54, 3
    s_and_b32 s55, s47, 1
    s_add_u32 s54, s54, s55
    s_lshl_b32 s55, s54, 5
    s_add_u32 s55, s55, s48
    v_add_u32 v{SA}, s55, v{SA}
    v_add_u32 v{SA+1}, {2*1088}, v{SA}
    s_lshl_b32 s55, s51, 4
    s_add_u32 s54, s54, s55
    s_lshl_b32 s54, s54, 5
    s_add_u32 s54, s54, s50
    s_lshl_b32 s54, s54, 10
    s_add_u32 s54, s54, {hex(W13F)}
    s_mov_b32 s55, {64*1024}
    s_branch k2_shdone
    k2_shw2:
    s_mov_b32 s12, s20
    s_mov_b32 s13, s21
    s_sub_u32 s50, s46, 224
    s_lshl_b32 s52, s50, 14
    s_lshl_b32 s53, s47, 12
    s_add_u32 s52, s52, s53
    s_movk_i32 s53, 1024
    v_mov_b32 v{SA+2}, v3
    v_lshl_add_u32 v{SA}, v{SH}, 3, v{SH+2}
    v_mul_u32_u24 v{SA}, 1088, v{SA}
    v_and_b32 v{SA+1}, 1, v{SH+3}
    v_lshl_add_u32 v{SA}, v{SA+1}, 5, v{SA}
    v_lshrrev_b32 v{SA+1}, 1, v{SH+3}
    v_lshl_add_u32 v{SA+1}, v{SH+1}, 1, v{SA+1}
    v_lshl_add_u32 v{SA}, v{SA+1}, 3, v{SA}
    s_lshl_b32 s55, s47, 8
    s_add_u32 s55, s55, s48
    v_add_u32 v{SA}, s55, v{SA}
    v_add_u32 v{SA+1}, {4*1088}, v{SA}
    s_mul_i32 s54, s47, {4*112*1024}
    s_lshl_b32 s55, s50, 10
    s_add_u32 s54, s54, s55
    s_add_u32 s54, s54, {hex(W2F)}
    s_mov_b32 s55, {112*1024}
    s_cmp_lt_u32 s46, 336
    s_cbranch_scc1 k2_shdone
    s_mov_b32 s54, 0x40000000
    k2_shdone:
    s_mul_i32 s49, s47, {4*1088}
    s_add_u32 s48, s48, s49""")
    A.stamp()
    A(f"s_waitcnt vmcnt({vm.n('q')})\ns_barrier")
    for j in range(2,6): kv(j)
    A.stamp()
    bufs=[S[0],S[1],O,NM]
    for t in range(4): A(f"ds_read_b128 {r(WO+4*t)}, v3 offset:{TS*t}")
    for t in range(4): A(f"s_waitcnt lgkmcnt({3-t})\n{mf32} {r(bufs[t],16)}, {r(WO+4*t)}, {r(Q)}, 0")
    A(f"ds_read_b128 {r(K)}, v3 offset:{TS}\nds_read_b128 {r(V1)}, v{VA} offset:544\nds_read_b128 {r(V0)}, v{VA}\ns_nop 3")
    for t in range(4):
        b=bufs[t]
        for i in range(8):
            d=P0+(i%2)
            A(f"v_max3_f32 v{d}, v{b+2*i}, v{b+2*i+1}, v{d}" if (t or i>1) else f"v_max_f32 v{d}, v{b+2*i}, v{b+2*i+1}")
    def finish_max(off):
        A(f"""v_max_f32 v{P0}, v{P0}, v{P0+1}
        v_mov_b32 v{P0+1}, v{P0}
        s_nop 1
        v_permlane32_swap_b32 v{P0}, v{P0+1}
        s_nop 1
        v_max_f32 v{P0}, v{P0}, v{P0+1}
        v_sub_f32 v{NM}, {off}, v{P0}""")
        for i in range(1,16): A(f"v_mov_b32 v{NM+i}, v{NM}")
        for i in range(16): A(f"v_mov_b32 v{O+i}, 0")
    finish_max("0xc2b00000")
    A(f"{mf32} {r(S[0],16)}, {r(WO)}, {r(Q)}, {r(NM,16)}\ns_nop 11")
    A.stamp()
    def wo_reg(reg,t,s,tag):
        off=t*16384+s*1024
        A(f"s_add_u32 s39, s38, {off & ~4095}\nbuffer_load_dwordx4 {r(reg)}, v3, s[4:7], s39 offen offset:{off&4095}"); vm.add(tag)
    def wo_lds(t,s):
        off=t*16384+s*1024
        A(f"s_add_u32 m0, s40, {(s-NREG)*32768+t*1024}\ns_add_u32 s39, s38, {off}\nbuffer_load_dwordx4 v3, s[4:7], s39 offen lds"); vm.add('wol')
    def pf(sreg,off):
        A(f"buffer_load_dword v{DUM}, v{T}, s[4:7], s{sreg} offen" + (f"\ns_add_u32 s{sreg}, s{sreg}, {off}" if off else "")); vm.add('pf')
    def sh_ld(i):
        A(f"s_add_u32 m0, s48, {1088*i}\ns_nop 0\nbuffer_load_dwordx4 v{SA+2}, s[12:15], s52 offen lds\ns_add_u32 s52, s52, s53"); vm.add('sh')
    def sh_rd(i):
        A(f"ds_read_b64_tr_b16 v[{SH+4*i}:{SH+4*i+1}], v{SA} offset:{64*i}\nds_read_b64_tr_b16 v[{SH+4*i+2}:{SH+4*i+3}], v{SA+1} offset:{64*i}")
    def sh_st(i):
        A(f"buffer_store_dwordx4 {r(SH+4*i)}, v3, s[4:7], s54 offen{ST}\ns_add_u32 s54, s54, s55"); vm.add('shs')
    def xm_ld(i):
        if i==0: A(f"s_add_u32 m0, s27, {LX}\ns_lshl_b32 s36, s24, 10\nbuffer_load_dwordx4 v3, s[8:11], s36 offen lds")
        else: A(f"s_min_u32 s37, s27, {5*1024}\ns_add_u32 m0, s37, {LM}\ns_add_u32 s37, s37, 4096\nbuffer_load_dwordx4 v3, s[4:7], s37 offen lds")
        vm.add('xm')
    slotA={}; slotB={}
    for i in range(4): slotA[2*i]=lambda i=i: sh_ld(i)
    for j in range(6,13): slotB[j-6]=lambda j=j: kv(j)
    slotA[9]=lambda: xm_ld(0); slotA[11]=lambda: xm_ld(1)
    for i in range(4):
        slotA[20+i]=lambda i=i: sh_rd(i)
        slotA[24+i]=lambda i=i: sh_st(i)
        slotA[32+i]=lambda i=i: kv(13+i)
    for i in range(8): slotA[36+i]=lambda i=i: wo_lds(i%4,NREG+i//4)
    for i in range(4): slotA[48+i]=lambda i=i: wo_lds(i,NREG+2)
    for i in range(40): slotB[10+i]=lambda i=i: wo_reg(WO+4*i,i%4,i//4,'wor')
    EP=int(os.environ.get('EP','1')) and FZ; TP=int(os.environ.get('TP','48'))
    bars={4:('kv',5),20:'xm',32:('shs' if EP else None),48:('kv',16)}
    base={KAD:0,VA:0}
    def la(reg,off):
        if off-base[reg]>65000:
            A(f"v_add_u32 v{reg}, {30*TS}, v{reg}"); base[reg]+=30*TS
        return f"v{reg} offset:{off-base[reg]}"
    seg=[0,4,20,32,48,64]
    for t in range(64):
        s=S[t%2]; sn=S[(t+1)%2]
        e=lambda i: A(f"v_exp_f32 v{s+i}, v{s+i}")
        c=lambda i: A(f"v_cvt_pk_bf16_f32 v{P0+i}, v{s+2*i}, v{s+2*i+1}")
        if t in bars:
            A("s_waitcnt lgkmcnt(1)" + (f" vmcnt({vm.n(bars[t])})" if bars[t] else "") + "\ns_barrier")
        if t==(32 if EP else 48) and FZ:
            A(f"""s_cmp_eq_u32 s3, 0
            s_cselect_b64 exec, 1, 0
            s_and_b32 s56, s2, 15
            s_lshl_b32 s56, s56, 7
            s_add_u32 s56, s56, 0x18000
            v_mov_b32 v{DUM}, 1
            buffer_atomic_add v{DUM}, v1, s[4:7], s56 offen sc1
            s_mov_b64 exec, -1"""); vm.add('sa')
        if EP and t==TP:
            A(f"""v_lshlrev_b32 v{DUM}, 7, v1
            s_cmp_eq_u32 s3, 0
            s_cselect_b64 exec, 0xffff, 0
            s_mov_b32 s57, 0x18000
            buffer_load_dword v0, v{DUM}, s[4:7], s57 offen sc0 sc1
            s_mov_b64 exec, -1
            s_bfe_u32 s56, s2, 0x10002
            s_mul_i32 s56, s56, 7
            s_lshr_b32 s57, s2, 5
            s_add_u32 s56, s56, s57
            s_lshl_b32 s56, s56, 2
            s_bfe_u32 s57, s2, 0x20003
            s_add_u32 s56, s56, s57
            s_lshl_b32 s56, s56, 16
            s_add_u32 s56, s56, {hex(W13F)}"""); vm.add('ep')
        if EP and t==TP+7:
            A(f"""s_waitcnt vmcnt({vm.n('ep')})
            v_cmp_eq_u32 vcc, 16, v0
            s_and_b32 s42, vcc_lo, 0xffff
            s_cmp_eq_u32 s42, 0xffff
            s_cselect_b32 s42, s3, 1
            s_cmp_eq_u32 s42, 0
            s_cselect_b64 s[42:43], -1, 0""")
        if EP and TP+7<=t<TP+15:
            A(f"""s_mov_b64 exec, s[42:43]
            buffer_load_dword v0, v{DUM}, s[4:7], s56 offen
            s_mov_b64 exec, -1
            s_add_u32 s56, s56, 8192"""); vm.add('ep2')
        if t in (48,) and not FZ: A.stamp()
        if PRIO:
            a=max(x for x in seg if x<=t); b=min(x for x in seg if x>t); q=(b-a)//4
            if (t-a)%q==0: A(f"s_setprio {3-(t-a)//q}")
        e(0); e(1)
        A(f"s_waitcnt lgkmcnt(1)\n{mf32} {r(O,16)}, {r(V1)}, {r(P1)}, {r(O,16)}")
        if t in slotA: slotA[t]()
        e(2); e(3); c(0); e(4); e(5)
        if t<63: A(f"{mf32} {r(sn,16)}, {r(K)}, {r(Q)}, {r(NM,16)}")
        if t<62: A(f"ds_read_b128 {r(K)}, {la(KAD,TS*(t+2))}")
        c(1); e(6); e(7)
        if t in slotB: slotB[t]()
        c(2); e(8); e(9); c(3); e(10); e(11)
        A(f"s_waitcnt lgkmcnt({1 if t<62 else 0})\n{mf32} {r(O,16)}, {r(V0)}, {r(P0)}, {r(O,16)}")
        A(f"ds_read_b128 {r(V1)}, {la(VA,TS*t+544)}")
        A(f"ds_read_b128 {r(V0)}, {la(VA,TS*min(t+1,63))}")
        c(4); e(12); e(13); c(5); e(14); e(15); c(6); c(7)
    VBASE=base[VA]
    A(f"s_waitcnt lgkmcnt(0)\ns_nop 0\n{mf32} {r(O,16)}, {r(V1)}, {r(P1)}, {r(O,16)}")
    A.stamp()
    A("s_nop 11")
    A(f"""v_max3_f32 v{P0}, |v{O}|, |v{O+1}|, |v{O+2}|
    v_max3_f32 v{P0}, |v{O+3}|, |v{O+4}|, v{P0}
    v_max3_f32 v{P0}, |v{O+5}|, |v{O+6}|, v{P0}
    v_max_f32 v{P0}, |v{O+7}|, v{P0}
    v_add_f32 v{P0+1}, v{O}, v{O+1}
    v_add_f32 v{P0+2}, v{O+2}, v{O+3}
    v_add_f32 v{P0+3}, v{O+4}, v{O+5}
    v_add_f32 v{P1}, v{O+6}, v{O+7}
    v_add_f32 v{P0+1}, v{P0+1}, v{P0+2}
    v_add_f32 v{P0+3}, v{P0+3}, v{P1}
    v_add_f32 v{P0+1}, v{P0+1}, v{P0+3}
    v_add_f32 v{P0+1}, v{P0+1}, v{O+8}
    v_mov_b32 v{P0+2}, 0x207
    v_cmp_class_f32 s[36:37], v{P0+1}, v{P0+2}
    v_cmp_gt_f32 vcc, 0x0f800000, v{P0}
    s_nop 1
    s_or_b64 s[36:37], s[36:37], vcc
    s_cmp_lg_u64 s[36:37], 0
    s_cbranch_scc1 k2_slow""")
    if os.environ.get('FORCESLOW'): A("s_branch k2_slow")
    A("k2_tail:")
    LATE=8
    A(f"v_mov_b32 v{P1}, v{O+8}\ns_nop 1\nv_permlane32_swap_b32 v{O+8}, v{P1}\ns_nop 1\nv_rcp_f32 v{P1}, v{O+8}\nv_lshlrev_b32 v2, 7, v1")
    for i in range(8): A(f"v_mul_f32 v{O+i}, v{O+i}, v{P1}")
    A.pack8(P0,O)
    A(f"""s_lshl_b32 s37, s3, 4
    s_add_u32 s37, s37, {LDS_O}
    v_add_u32 v2, s37, v2
    ds_write_b128 v2, {r(P0)}
    v_lshlrev_b32 v{T}, 5, v1
    v_lshrrev_b32 v2, 4, v1
    v_lshlrev_b32 v2, 7, v2
    v_and_b32 v{DUM}, 7, v1
    v_lshl_add_u32 v2, v{DUM}, 4, v2
    v_add_u32 v2, {LDS_O}, v2
    v_add_u32 v{VA}, s40, v3
    v_add_u32 v{KAD}, 0x10000, v{VA}""")
    late=[(s,t) for s in range(NREG+NLDS,16) for t in range(4)]
    def late_ld(n):
        for _ in range(n):
            if late:
                s,t=late.pop(0); wo_reg(LATE+16*(s-NREG-NLDS)+4*t,t,s,('late',s))
    late_ld(2)
    A("s_waitcnt lgkmcnt(0)\ns_barrier")
    A.stamp()
    XR=4; GA=160; SB=168; CB=176; ACC=56; Bf=[72,76,80,84,88]; NBF=5
    lq=[]
    def dsr(reg,addr,off,tag): A(f"ds_read_b128 {r(reg)}, v{addr} offset:{off}"); lq.append(tag)
    def lw(tag): return min(15,len(lq)-1-max(i for i,t in enumerate(lq) if t==tag))
    for s in range(NBF): dsr(Bf[s],2,512*s,('b',s))
    for s in range(16):
        if s<NREG: wreg=WO+16*s
        elif s<NREG+NLDS: wreg=WO+16*(s-NREG)
        else: wreg=LATE+16*(s-NREG-NLDS)
        n=lw(('b',s))
        if NREG<=s<NREG+NLDS: n=min(n,lw(('w',s)))
        w=f"s_waitcnt lgkmcnt({n})"
        if s==0: w+=f" vmcnt({min(vm.n('wol'),vm.n('wor'))})"
        if s>=NREG+NLDS: w+=f" vmcnt({vm.n(('late',s))})"
        A(w)
        for t in range(4):
            A(f"v_mfma_f32_16x16x32_bf16 {r(ACC+4*t)}, {r(wreg+4*t)}, {r(Bf[s%NBF])}, {'0' if s==0 else r(ACC+4*t)}")
        late_ld(2)
        if s+NBF<16: dsr(Bf[s%NBF],2,512*(s+NBF),('b',s+NBF))
        if 2<=s<2+2*NLDS:
            s2=(s-2)//2
            for t in (0,1) if s%2==0 else (2,3): dsr(WO+16*s2+4*t,VA if s2<2 else KAD,(s2%2)*32768+t*1024,('w',NREG+s2))
        if s==11 and FZ:
            A("""v_lshlrev_b32 v250, 7, v1
            s_cmp_eq_u32 s3, 0
            s_cselect_b64 exec, 0xffff, 0
            s_mov_b32 s57, 0x18000
            buffer_load_dword v251, v250, s[4:7], s57 offen sc0 sc1
            s_mov_b64 exec, -1"""); vm.add('sp')
        if s==12:
            A(f"v_add_u32 v{DUM}, {LM}, v{T}\ns_add_u32 s37, s27, {LX}\nv_add_u32 v{VA}, s37, v3")
            dsr(XR,VA,0,'e')
            for i in range(6): dsr(GA+4*i,DUM,(i//2)*2048+(i%2)*16,'e')
    A.stamp()
    A(f"""v_and_b32 v2, 15, v1
    v_mul_u32_u24 v2, 2064, v2
    v_lshrrev_b32 v{DUM}, 4, v1
    v_lshl_add_u32 v2, v{DUM}, 6, v2
    s_lshl_b32 s37, s3, 8
    s_add_u32 s37, s37, {LDS_Y}
    v_add_u32 v2, s37, v2
    s_mov_b32 s42, 0x00ff00ff
    s_mov_b32 s43, 0x00ff00ff
    s_mov_b64 exec, s[42:43]""")
    for t in range(4): A(f"ds_write_b128 v2, {r(ACC+4*t)} offset:{16*t}")
    A(f"""s_mov_b64 exec, -1
    s_mul_i32 s37, s3, 2064
    s_add_u32 s37, s37, {LDS_Y}
    v_add_u32 v2, s37, v{T}""")
    if FZ:
        A(f"""s_bfe_u32 s56, s2, 0x10002
        s_mul_i32 s56, s56, 7
        s_lshr_b32 s36, s2, 5
        s_add_u32 s56, s56, s36
        s_lshl_b32 s56, s56, 3
        s_add_u32 s56, s56, s3
        s_lshl_b32 s56, s56, 15
        s_add_u32 s56, s56, {hex(W13F)}
        s_cmp_lg_u32 s3, 0
        s_cbranch_scc1 k2_pd
        s_mov_b32 s36, 200000
        s_mov_b64 exec, 0xffff
        k2_pl:
        s_waitcnt vmcnt(0)
        v_cmp_ne_u32 vcc, 16, v251
        s_cbranch_vccz k2_pd
        buffer_load_dword v251, v250, s[4:7], s57 offen sc0 sc1
        s_sub_u32 s36, s36, 1
        s_cmp_lg_u32 s36, 0
        s_cbranch_scc1 k2_pl
        k2_pd:
        s_mov_b64 exec, -1""")
    A("""s_waitcnt lgkmcnt(0)
    s_barrier
    ds_read_b128 v[24:27], v2
    ds_read_b128 v[28:31], v2 offset:16""")
    if FZ:
        for q in range(NW1):
            A(f"buffer_load_dwordx4 v[{128+4*q}:{131+4*q}], v3, s[4:7], s56 offen offset:{(q%4)*1024}")
            if q%4==3: A("s_add_u32 s56, s56, 4096")
        if int(os.environ.get('WPF','0')):
            A("""v_min_u32 v250, 47, v1
            v_lshlrev_b32 v250, 7, v250
            s_bfe_u32 s36, s2, 0x20003
            s_mul_i32 s36, s36, 6144
            s_add_u32 s56, s56, s36
            buffer_load_dword v251, v250, s[4:7], s56 offen""")
    A.stamp()
    A.unpack8(40,XR)
    A("s_waitcnt lgkmcnt(0)")
    for j in range(8): A(f"v_fmac_f32 v{40+j}, v{24+j}, v{GA+j}")
    A.pack8(32,40); A.unpack8(24,32)
    A(f"s_lshl_b32 s36, s24, 10\ns_add_u32 s36, s36, {hex(X1)}\nbuffer_store_dwordx4 v[32:35], v3, s[4:7], s36 offen{ST2}")
    A("v_add_f32 v40, v24, v25\nv_add_f32 v41, v26, v27\nv_add_f32 v42, v28, v29\nv_add_f32 v43, v30, v31\nv_add_f32 v40, v40, v41\nv_add_f32 v42, v42, v43\nv_add_f32 v40, v40, v42")
    A.wave_sum([40])
    A.stamp()
    A("v_mul_f32 v40, 0x3b000000, v40\ns_nop 0\nv_readlane_b32 s44, v40, 63\ns_nop 1")
    for j in range(8): A(f"v_subrev_f32 v{24+j}, s44, v{24+j}")
    A("v_mul_f32 v40, v24, v24\nv_mul_f32 v41, v25, v25")
    for j in range(2,8): A(f"v_fmac_f32 v{40+j%2}, v{24+j}, v{24+j}")
    A("v_add_f32 v40, v40, v41")
    A.wave_sum([40])
    A("""v_mov_b32 v41, 0x3727c5ac
    v_fmac_f32 v41, 0x3b000000, v40
    v_rsq_f32 v41, v41
    v_mul_u32_u24 v2, 144, v1
    s_lshl_b32 s37, s3, 4
    v_readlane_b32 s44, v41, 63""")
    A(f"s_add_u32 s37, s37, {LDS_H}\ns_mul_i32 s27, s3, {8*144}\ns_add_u32 s27, s27, {LDS_H}")
    for j in range(8): A(f"v_mul_f32 v{24+j}, v{24+j}, v{CB+j}")
    for j in range(8): A(f"v_fmac_f32 v{SB+j}, s44, v{24+j}")
    A.pack8(36,SB)
    A.stamp()
    A(f"""v_add_u32 v2, s37, v2
    ds_write_b128 v2, v[36:39]
    v_add_u32 v2, s27, v3
    v_lshrrev_b32 v40, 3, v1
    v_lshl_add_u32 v2, v40, 4, v2
    v_lshlrev_b32 v40, 9, v40
    v_and_b32 v41, 7, v1
    v_lshl_add_u32 v40, v41, 4, v40
    s_lshl_b32 s37, s3, 12
    s_lshl_b32 s36, s3, 4
    s_sub_u32 s25, s25, s36
    s_add_u32 s25, s25, s37
    s_add_u32 s25, s25, {hex(H2F)}
    s_waitcnt lgkmcnt(0)
    s_barrier
    ds_read_b128 v[36:39], v2
    s_waitcnt lgkmcnt(0)
    buffer_store_dwordx4 v[36:39], v40, s[4:7], s25 offen{ST2}""")
    if FZ:
        A.ns=1; A.stamp()
        A.ldptr(8,'out')
        A("""s_lshl_b32 s36, s24, 4
        s_add_u32 s36, s36, 0x10000
        v_mov_b32 v40, 1
        s_cmp_eq_u32 s3, 0
        s_cselect_b64 s[42:43], 1, 0
        s_waitcnt vmcnt(0)
        s_barrier
        s_mov_b64 exec, s[42:43]
        buffer_store_dword v40, v1, s[4:7], s36 offen sc0 sc1
        s_mov_b64 exec, -1""")
        A.stamp()
        k3f.k3f(A,NW1)
    else: A.stamp_end('k2',wave=int(os.environ.get('SW','0')))
    A("k2_end:\ns_endpgm")
    A(f"k2_slow:\nv_subrev_u32 v{VA}, {VBASE}, v{VA}")
    A(f"v_mov_b32 v{P0}, 0xff800000\nv_mov_b32 v{P0+1}, 0xff800000\ns_mov_b32 s41, {hex(KV)}")
    A(f"""k2_s1:
    buffer_load_dwordx4 {r(K)}, v3, s[4:7], s41 offen
    s_waitcnt vmcnt(0)
    {mf32} {r(S[0],16)}, {r(K)}, {r(Q)}, 0
    s_add_u32 s41, s41, {TS}
    s_nop 11""")
    for i in range(8): A(f"v_max3_f32 v{P0}, v{S[0]+2*i}, v{S[0]+2*i+1}, v{P0}")
    A(f"s_cmp_lt_u32 s41, {hex(KV+64*TS)}\ns_cbranch_scc1 k2_s1")
    finish_max("0")
    A(f"""s_mov_b32 s41, {hex(KV)}
    k2_s2:
    buffer_load_dwordx4 {r(K)}, v3, s[4:7], s41 offen
    buffer_load_dwordx4 {r(V0)}, v{VA}, s[4:7], s41 offen
    buffer_load_dwordx4 {r(V1)}, v{VA}, s[4:7], s41 offen offset:544
    s_waitcnt vmcnt(0)
    {mf32} {r(S[0],16)}, {r(K)}, {r(Q)}, {r(NM,16)}
    s_add_u32 s41, s41, {TS}
    s_nop 11""")
    for i in range(16): A(f"v_exp_f32 v{S[0]+i}, v{S[0]+i}")
    for i in range(8): A(f"v_cvt_pk_bf16_f32 v{P0+i}, v{S[0]+2*i}, v{S[0]+2*i+1}")
    A(f"""s_nop 1
    {mf32} {r(O,16)}, {r(V0)}, {r(P0)}, {r(O,16)}
    {mf32} {r(O,16)}, {r(V1)}, {r(P1)}, {r(O,16)}
    s_cmp_lt_u32 s41, {hex(KV+64*TS)}
    s_nop 7
    s_cbranch_scc1 k2_s2
    s_nop 7
    s_branch k2_tail""")
    return A.text(), kernel_desc("k2_kernel", 256), "; @launch kernel=k2_kernel grid=(256,1,1) block=(512,1,1) lds=163840"
```
